```python
import torch

def _softmax(x, axis=-1):
    return torch.softmax(x, dim=axis)
def _gelu(x):
    return torch.nn.functional.gelu(x, approximate="tanh")
def _silu(x):
    return torch.nn.functional.silu(x)
def _sigmoid(x):
    return torch.sigmoid(x)
def _layernorm(x, axis=-1, eps=1e-5):
    m = x.mean(dim=axis, keepdim=True)
    v = x.var(dim=axis, keepdim=True, unbiased=False)
    return (x - m) / torch.sqrt(v + eps)
def _scatter_add(tgt, idx, src, axis=0):
    return tgt.clone().index_add_(axis, idx, src)
def _segment_sum(src, seg, n):
    out = torch.zeros((n,) + src.shape[1:], dtype=src.dtype)
    return out.index_add_(0, seg, src)
def _pad(x, pw):
    flat = tuple(v for pair in reversed(pw) for v in pair)
    return torch.nn.functional.pad(x, flat)

kernel_name = 'concat_heads__gqa_block_cached__mha_block_cached__near_ridge'

def setup_inputs():

    _w = (lambda a: (lambda t: t.to(torch.bfloat16) if t.is_floating_point() else t)(torch.as_tensor(a)))
    def _A_setup():
        B, Sq, D = 8, 112, 448
        Hq, Hkv, Sk, Dh = 16, 8, 2048, 256
        assert Hq % Hkv == 0, (Hq, Hkv)
        return {
            "x": _w((lambda *s: torch.randn(*s, dtype=torch.bfloat16) * 0.8)(B, Sq, D)),
            "k_cache": _w((lambda *s: torch.randn(*s, dtype=torch.bfloat16) * 0.8)(B, Hkv, Sk, Dh)),
            "v_cache": _w((lambda *s: torch.randn(*s, dtype=torch.bfloat16) * 0.05)(B, Hkv, Sk, Dh)),
            "wq": _w((lambda *s: torch.randn(*s, dtype=torch.bfloat16) * 0.8)(D, Hq * Dh) * (D ** -0.5)),
            "wo": _w((lambda *s: torch.randn(*s, dtype=torch.bfloat16) * 0.05)(Hq * Dh, D) * ((Hq * Dh) ** -0.5)),
        }
    _A_in = _A_setup()

    def _B_setup():
        B, Sq, D = 8, 112, 448
        H, Sk, Dh = 16, 2048, 256
        return {
            "x": _w((lambda *s: torch.randn(*s, dtype=torch.bfloat16) * 0.8)(B, Sq, D)),
            "k_cache": _w((lambda *s: torch.randn(*s, dtype=torch.bfloat16) * 0.8)(B, H, Sk, Dh)),
            "v_cache": _w((lambda *s: torch.randn(*s, dtype=torch.bfloat16) * 0.05)(B, H, Sk, Dh)),
            "wq": _w((lambda *s: torch.randn(*s, dtype=torch.bfloat16) * 0.8)(D, H * Dh) * (D ** -0.5)),
            "wo": _w((lambda *s: torch.randn(*s, dtype=torch.bfloat16) * 0.05)(H * Dh, D) * ((H * Dh) ** -0.5)),
        }
    _B_in = _B_setup()

    return {
        "A_x": _A_in["x"],
        "A_k_cache": _A_in["k_cache"],
        "A_v_cache": _A_in["v_cache"],
        "A_wq": _A_in["wq"],
        "A_wo": _A_in["wo"],
        "B_x": _B_in["x"],
        "B_k_cache": _B_in["k_cache"],
        "B_v_cache": _B_in["v_cache"],
        "B_wq": _B_in["wq"],
        "B_wo": _B_in["wo"],
    }

def reference(A_x, A_k_cache, A_v_cache, A_wq, A_wo, B_x, B_k_cache, B_v_cache, B_wq, B_wo):
    def _A_ref(x, k_cache, v_cache, wq, wo):
        B, Sq, D = x.shape
        Hq, Dh = 16, 256
        Hkv = k_cache.shape[1]
        rep = Hq // Hkv
        q = (lambda x, *d: x.permute(*d))((x @ wq).reshape(B, Sq, Hq, Dh), 0, 2, 1, 3)
        k = (lambda x, n, axis: torch.repeat_interleave(x, n, dim=axis))(k_cache, rep, axis=1)
        v = (lambda x, n, axis: torch.repeat_interleave(x, n, dim=axis))(v_cache, rep, axis=1)
        scores = torch.einsum("bhqd,bhkd->bhqk", q, k) * (Dh ** -0.5)
        p = _softmax(scores, axis=-1)
        o = torch.einsum("bhqk,bhkd->bhqd", p, v)
        return (lambda x, *d: x.permute(*d))(o, 0, 2, 1, 3).reshape(B, Sq, Hq * Dh) @ wo

    def _B_ref(x, k_cache, v_cache, wq, wo):
        B, Sq, D = x.shape
        H, Dh = 16, 256
        q = (lambda x, *d: x.permute(*d))((x @ wq).reshape(B, Sq, H, Dh), 0, 2, 1, 3)
        scores = torch.einsum("bhqd,bhkd->bhqk", q, k_cache) * (Dh ** -0.5)
        p = _softmax(scores, axis=-1)
        o = torch.einsum("bhqk,bhkd->bhqd", p, v_cache)
        return (lambda x, *d: x.permute(*d))(o, 0, 2, 1, 3).reshape(B, Sq, H * Dh) @ wo

    a = _A_ref(A_x, A_k_cache, A_v_cache, A_wq, A_wo)
    b = _B_ref(B_x, B_k_cache, B_v_cache, B_wq, B_wo)
    return torch.concatenate([a, b], axis=-1)
```

```python
import re

REG = re.compile(r'(?<![\w.])([vas])(?:(\d+)|\[(\d+):(\d+)\])(?![\w])')

def regs_of(op):
    out = []
    for m in REG.finditer(op):
        k = m.group(1)
        if m.group(2) is not None:
            out.append((k, int(m.group(2))))
        else:
            out += [(k, i) for i in range(int(m.group(3)), int(m.group(4)) + 1)]
    for sp in ('vcc', 'm0', 'exec', 'scc'):
        if re.search(r'(?<![\w])' + sp + r'(?![\w])', op):
            out.append((sp, 0))
    return out

TRANS = ('v_exp_f32', 'v_log_f32', 'v_rcp_f32', 'v_rsq_f32', 'v_sqrt_f32')

class Ins:
    __slots__ = ('text', 'op', 'rd', 'wr', 'kind', 'tag')
    def __init__(self, text, tag=None):
        self.text = text; self.tag = tag
        t = text.split(';')[0].strip()
        parts = t.split(None, 1)
        self.op = op = parts[0]
        ops = [o.strip() for o in re.split(r',(?![^\[]*\])', parts[1])] if len(parts) > 1 else []
        rd, wr = [], []
        R = regs_of
        if op.startswith('v_mfma'):
            self.kind = 'mfma'; wr = R(ops[0]); rd = R(ops[1]) + R(ops[2]) + R(ops[3])
        elif op.startswith('ds_read'):
            self.kind = 'ds'; wr = R(ops[0]); rd = R(ops[1])
        elif op.startswith('ds_write'):
            self.kind = 'ds'; rd = sum((R(o) for o in ops), [])
        elif op.startswith('buffer_load'):
            self.kind = 'vm'
            if ' lds' in t:
                rd = sum((R(o) for o in ops), []) + [('m0', 0)]
            else:
                wr = R(ops[0]); rd = sum((R(o) for o in ops[1:]), [])
        elif op.startswith('buffer_store') or op.startswith('global_store'):
            self.kind = 'vm'; rd = sum((R(o) for o in ops), [])
        elif op.startswith('global_load'):
            self.kind = 'vm'; wr = R(ops[0]); rd = sum((R(o) for o in ops[1:]), [])
        elif op.startswith('global_atomic') or op.startswith('buffer_atomic'):
            self.kind = 'vm'
            if ' sc0' in t and op.startswith('global_atomic'):
                wr = R(ops[0]); rd = sum((R(o) for o in ops[1:]), [])
            else:
                rd = sum((R(o) for o in ops), [])
        elif op in ('buffer_wbl2', 'buffer_inv'):
            self.kind = 'vm'
        elif op.startswith('v_cmp'):
            self.kind = 'valu'; wr = R(ops[0]); rd = sum((R(o) for o in ops[1:]), [])
        elif op.startswith('v_permlane32_swap') or op.startswith('v_permlane16_swap'):
            self.kind = 'valu'; wr = R(ops[0]) + R(ops[1]); rd = list(wr)
        elif op.startswith('v_'):
            self.kind = 'valu'; wr = R(ops[0]); rd = sum((R(o) for o in ops[1:]), [])
            if op.startswith('v_fmac') or op.startswith('v_dot2c'): rd += wr
            if op.startswith('v_add_co') or op.startswith('v_addc_co'):
                wr += R(ops[1]); rd = sum((R(o) for o in ops[2:]), [])
        elif op.startswith('s_load') or op in ('s_memtime', 's_memrealtime'):
            self.kind = 'smem'; wr = R(ops[0]); rd = sum((R(o) for o in ops[1:]), [])
        elif op in ('s_waitcnt', 's_barrier', 's_nop', 's_endpgm', 's_branch', 's_sleep', 's_setprio') or op.startswith('s_cbranch'):
            self.kind = 'ctl'
            if op == 's_cbranch_vccz' or op == 's_cbranch_vccnz': rd = [('vcc', 0)]
        elif op.startswith('s_cmp'):
            self.kind = 'salu'; rd = sum((R(o) for o in ops), [])
        elif op in ('s_setpc_b64',):
            self.kind = 'ctl'; rd = R(ops[0])
        elif op.startswith('s_'):
            self.kind = 'salu'; wr = R(ops[0]) if ops else []; rd = sum((R(o) for o in ops[1:]), [])
        else:
            raise ValueError('unknown op ' + text)
        self.rd = set(rd); self.wr = set(wr)
    def states(self):
        if self.op == 's_nop':
            return int(self.text.split()[1]) + 1
        return 1

class Prog:
    def __init__(self):
        self.items = []
        self.lg = []
        self.vm = []
        self.auto = True
    def raw(self, s): self.items.append(s)
    def label(self, s): self.items.append(s + ':')
    def _need(self, q, regs):
        idx = -1
        for i, (d, tag) in enumerate(q):
            if d & regs: idx = i
        return idx
    def wait(self, vm=None, lg=None):
        parts = []
        if vm is not None: vm = min(vm, 63)
        if lg is not None: lg = min(lg, 15)
        if vm is not None and vm < len(self.vm):
            self.vm = self.vm[len(self.vm) - vm:] if vm else []
            parts.append(f'vmcnt({min(vm,63)})')
        if lg is not None and lg < len(self.lg):
            self.lg = self.lg[len(self.lg) - lg:] if lg else []
            parts.append(f'lgkmcnt({min(lg,15)})')
        if parts:
            self.items.append(Ins('s_waitcnt ' + ' '.join(parts)))
    def vm_count_for(self, tags):
        idx = -1
        for i, (d, tag) in enumerate(self.vm):
            if tag in tags: idx = i
        return len(self.vm) - 1 - idx if idx >= 0 else None
    def wait_tags(self, tags, lg=None):
        n = self.vm_count_for(tags)
        self.wait(vm=n, lg=lg)
    def I(self, text, tag=None):
        ins = Ins(text, tag)
        if self.auto and ins.kind in ('mfma', 'valu', 'ds', 'vm'):
            touch = ins.rd | ins.wr
            i = self._need(self.lg, touch)
            j = self._need(self.vm, touch)
            vm = len(self.vm) - 1 - j if j >= 0 else None
            lg = len(self.lg) - 1 - i if i >= 0 else None
            if vm is not None or lg is not None:
                self.wait(vm=vm, lg=lg)
        self.items.append(ins)
        if ins.kind == 'ds':
            self.lg.append((set(ins.wr), tag))
        elif ins.kind == 'vm':
            self.vm.append((set(ins.wr), tag))
            assert len(self.vm) <= 63, 'vmcnt overflow at ' + text
        return ins
    def text(self):
        out = []
        for it in self.items:
            out.append(it if isinstance(it, str) else '  ' + it.text)
        return '\n'.join(out) + '\n'

def check_hazards(seq, name=''):
    errs = []
    n = len(seq)
    def is_vec(r): return r[0] in ('v', 'a')
    for i, a in enumerate(seq):
        dist = 0
        for j in range(i + 1, min(n, i + 24)):
            b = seq[j]
            need = 0
            why = ''
            if a.kind == 'valu':
                w = a.wr
                vw = {r for r in w if is_vec(r)}
                sw = {r for r in w if not is_vec(r)}
                if b.kind == 'mfma' and vw & b.rd: need, why = 2, 'valu->mfma'
                if b.op.startswith('v_permlane') and vw & b.rd: need, why = max(need, 2), 'valu->permlane'
                if (b.op.startswith('v_readfirstlane') or b.op.startswith('v_readlane')) and vw & b.rd: need, why = max(need, 1), 'valu->readlane'
                if a.op.replace('_e32', '').replace('_e64', '') in TRANS and b.kind in ('valu', 'mfma') and vw & b.rd: need, why = max(need, 1), 'trans->valu'
                if sw & b.rd:
                    if b.kind == 'valu': need, why = max(need, 2), 'valu sgpr->valu'
                    if b.kind == 'vm': need, why = max(need, 5), 'valu sgpr->vmem'
                    if b.kind in ('salu', 'ctl'): need, why = max(need, 0), 'valu sgpr->salu'
            if a.kind == 'mfma':
                passes = 8 if '32x32' in a.op else 4
                D = a.wr
                if b.kind == 'mfma':
                    ops = [o.strip() for o in re.split(r',(?![^\[]*\])', b.text.split(None, 1)[1])]
                    ab = set(regs_of(ops[1]) + regs_of(ops[2])); c = set(regs_of(ops[3]))
                    if D & ab: need, why = (12 if passes == 8 else 8), 'mfma D->mfma AB'
                    if D & c and c != D: need, why = max(need, 10 if passes == 8 else 6), 'mfma D->mfma C partial'
                    if D & b.wr and not (D & c) : need, why = max(need, 10 if passes == 8 else 6), 'mfma D->mfma D waw'
                elif b.kind in ('valu', 'ds', 'vm'):
                    if D & (b.rd | b.wr): need, why = (12 if passes == 8 else 8), 'mfma D->valu/mem'
                    ops = [o.strip() for o in re.split(r',(?![^\[]*\])', a.text.split(None, 1)[1])]
                    c = set(regs_of(ops[3]))
                    if b.kind == 'valu' and c & b.wr: need, why = max(need, 7 if passes == 8 else 3), 'mfma C war'
            if a.kind == 'salu' and ('m0', 0) in a.wr and b.kind == 'vm' and ' lds' in b.text: need, why = 1, 'm0->lds dma'
            if a.kind == 'vm' and 'store_dwordx4' in a.op and b.kind in ('valu',):
                ops = [o.strip() for o in re.split(r',(?![^\[]*\])', a.text.split(None, 1)[1])]
                data = set(regs_of(ops[0] if a.op.startswith('buffer') else ops[1]))
                if data & b.wr: need, why = 2, 'store data war'
            if need > dist:
                errs.append(f'{name}: {why}: need {need} have {dist}\n    {a.text}\n    {b.text}')
            dist += b.states()
            if dist >= 20: break
    return errs

def interleave(P, mfmas, gaps, pre=None):
    for i, m in enumerate(mfmas):
        P.I(m)
        for f in gaps[i]:
            if callable(f): f()
            elif isinstance(f, tuple): P.I(f[0], f[1])
            else: P.I(f)

def spread(items, ngaps, start, end, gaps):
    n = end - start
    k = len(items)
    for i, it in enumerate(items):
        g = start + (i * n) // k
        gaps[g].append(it)
```

```python
import sys, struct, math
from asmlib import *

KN = "concat_heads__gqa_block_cached__mha_block_cached__near_ridge_kernel"
K2 = "reduce_kernel"

def f32bits(x): return struct.unpack('<I', struct.pack('<f', x))[0]

class Cfg:
    stamp = False
    nt = " nt"
    wnt = ""
    pst = ""
    pld = ""
    T = 8.0
    def __init__(self, **kw):
        for k, v in kw.items(): setattr(self, k, v)

S0, S1, PP = 16, 32, 48
vMC, vTHR, vL0, vTM, vL1, vT1, vT2, vT3 = 56, 57, 58, 59, 60, 61, 62, 63
vKR = 64
vVR = 72
vKD = 76
vVD = 80
vQD = 82
vQR = 84
vX = 92
vOD = 93
vOR = 94
vPS = 100
vKR8 = 104
OO = 128
aV, aK, aQ, aF1, aX = 0, 64, 128, 192, 64
sX, sK, sV, sWQ, sWO, sP = 36, 40, 44, 48, 52, 56
sKOFF, sVOFF, sWB, sCNT, sC, sRC, sTC, sTMP, sTMP2 = 60, 61, 62, 63, 64, 65, 66, 67, 68
sRET = 70
sST = 72
SLOT = 16384

def vr(b, n): return f"v[{b}:{b+n-1}]"
def ar(b, n): return f"a[{b}:{b+n-1}]"
def sr(b, n): return f"s[{b}:{b+n-1}]"
MF = "v_mfma_f32_32x32x16_bf16"

def stamp(P, cfg, i):
    if cfg.stamp:
        P.I(f"s_memrealtime {sr(sST+2*i,2)}")

def setup(P, cfg):
    I = P.I
    I("s_cmp_ge_u32 s2, 256")
    I("s_cbranch_scc1 L_end")
    stamp(P, cfg, 0)
    I("s_load_dwordx16 s[8:23], s[0:1], 0")
    I("s_load_dwordx8 s[24:31], s[0:1], 64")
    I("s_load_dwordx2 s[32:33], s[0:1], 96")
    I("s_and_b32 s3, s2, 7")
    I("s_lshr_b32 s7, s2, 3")
    I("s_and_b32 s4, s7, 1")
    I("s_lshl_b32 s3, s3, 1")
    I("s_or_b32 s4, s4, s3")
    I("s_bfe_u32 s5, s7, 0x10001")
    I("s_lshr_b32 s6, s7, 2")
    I("v_and_b32 v1, 63, v0")
    I("v_lshrrev_b32 v2, 6, v0")
    I("v_lshrrev_b32 v3, 5, v1")
    I("v_readfirstlane_b32 s34, v2")
    I("v_and_b32 v4, 31, v1")
    I("v_lshlrev_b32 v5, 3, v2")
    I("v_add_u32 v5, v5, v3")
    I("s_lshl_b32 s62, s34, 12")
    I("v_lshl_add_u32 v6, v2, 5, v4")
    I("v_mul_u32_u24 v6, 896, v6")
    I(f"v_lshl_add_u32 v{vX}, v3, 4, v6")
    for jp in range(2):
        I(f"v_lshl_add_u32 v7, v3, 2, {8*jp}")
        I("v_xor_b32 v7, v7, v4")
        I("v_lshlrev_b32 v7, 4, v7")
        I(f"v_lshl_add_u32 v{vQD+jp}, v5, 13, v7")
        I(f"v_lshl_add_u32 v{vVD+jp}, v5, 9, v7")
    P.items.append(Ins("s_waitcnt lgkmcnt(0)"))
    I("s_cmp_eq_u32 s5, 0")
    I("s_cselect_b64 s[8:9], s[8:9], s[18:19]")
    I("s_cselect_b64 s[10:11], s[10:11], s[20:21]")
    I("s_cselect_b64 s[12:13], s[12:13], s[22:23]")
    I("s_cselect_b64 s[14:15], s[14:15], s[24:25]")
    I("s_cselect_b64 s[16:17], s[16:17], s[26:27]")
    I("s_lshl_b32 s3, s4, 9")
    I(f"s_add_u32 s{sWQ}, s14, s3"); I(f"s_addc_u32 s{sWQ+1}, s15, 0")
    I(f"s_mov_b32 s{sWQ+2}, {447*8192+512}"); I(f"s_mov_b32 s{sWQ+3}, 0x20000")
    I("s_mul_i32 s3, s6, 100352")
    I(f"s_add_u32 s{sX}, s8, s3"); I(f"s_addc_u32 s{sX+1}, s9, 0")
    I(f"s_mov_b32 s{sX+2}, 100352"); I(f"s_mov_b32 s{sX+3}, 0x20000")

def setup2(P, cfg):
    I = P.I
    I("s_lshl_b32 s3, s6, 4"); I("s_add_u32 s3, s3, s4")
    I("s_lshr_b32 s7, s3, 1")
    I("s_cmp_eq_u32 s5, 0")
    I("s_cselect_b32 s3, s7, s3")
    I("s_lshl_b32 s3, s3, 20")
    I(f"s_add_u32 s{sK}, s10, s3"); I(f"s_addc_u32 s{sK+1}, s11, 0")
    I(f"s_mov_b32 s{sK+2}, 0x100000"); I(f"s_mov_b32 s{sK+3}, 0x20000")
    I(f"s_add_u32 s{sV}, s12, s3"); I(f"s_addc_u32 s{sV+1}, s13, 0")
    I(f"s_mov_b32 s{sV+2}, 0x100000"); I(f"s_mov_b32 s{sV+3}, 0x20000")
    for j in range(4):
        I(f"v_add_u32 v7, {2*j}, v5")
        I("v_and_b32 v7, 15, v7")
        I("v_xor_b32 v7, v7, v4")
        I("v_lshlrev_b32 v7, 4, v7")
        I(f"v_lshl_add_u32 v{vKD+j}, v5, 9, v7")

def setup3(P, cfg):
    I = P.I
    I("s_mul_i32 s3, s4, 229376")
    I(f"s_add_u32 s{sWO}, s16, s3"); I(f"s_addc_u32 s{sWO+1}, s17, 0")
    I(f"s_mov_b32 s{sWO+2}, 229376"); I(f"s_mov_b32 s{sWO+3}, 0x20000")
    I("s_lshl_b32 s3, s5, 3"); I("s_add_u32 s3, s3, s6"); I("s_lshl_b32 s3, s3, 4"); I("s_add_u32 s3, s3, s4")
    I("s_mul_i32 s3, s3, 114688")
    I(f"s_add_u32 s{sP}, s32, s3"); I(f"s_addc_u32 s{sP+1}, s33, 0")
    I(f"s_mov_b32 s{sP+2}, 114688"); I(f"s_mov_b32 s{sP+3}, 0x20000")
    c = math.log2(math.e) / 16.0
    I(f"s_mov_b32 s{sC}, {f32bits(c):#x}")
    I(f"s_mov_b32 s{sRC}, {f32bits(1.0/c):#x}")
    I(f"s_mov_b32 s{sTC}, {f32bits(cfg.T/c):#x}")
    I("v_bfe_u32 v8, v1, 2, 2")
    I("v_and_b32 v9, 3, v1")
    I("v_bfe_u32 v10, v1, 4, 1")
    I("v_lshl_add_u32 v11, v10, 2, v9")
    I("v_lshlrev_b32 v11, 3, v11")
    I("v_and_b32 v12, 1, v9"); I("v_lshlrev_b32 v12, 1, v12"); I("v_lshrrev_b32 v13, 1, v9"); I("v_or_b32 v12, v12, v13")
    I("v_lshl_add_u32 v12, v10, 2, v12"); I("v_lshlrev_b32 v12, 3, v12")
    I("v_lshl_add_u32 v13, v3, 2, v8")
    I("v_lshlrev_b32 v13, 9, v13")
    I("v_add_u32 v13, v13, v11")
    I("v_add_u32 v13, 0x10000, v13")
    I("v_lshl_add_u32 v14, v3, 3, v8")
    I("v_lshlrev_b32 v14, 9, v14")
    I("v_add_u32 v14, v14, v12")
    for tt in range(4):
        I(f"v_xor_b32 v7, {tt}, v8")
        I(f"v_lshl_add_u32 v{vVR+tt}, v7, 6, v13")
        I(f"v_lshl_add_u32 v{vQR+tt}, v7, 6, v14")
        I(f"v_add_u32 v{vQR+4+tt}, 0x10000, v{vQR+tt}")

def setup4():
    L = []
    A = L.append
    A("v_and_b32 v15, 15, v4")
    A("v_xor_b32 v15, v15, v3")
    for s in range(8):
        A(f"v_xor_b32 v7, {2*s}, v15")
        A("v_lshlrev_b32 v7, 4, v7")
        A(f"v_lshl_add_u32 v{vKR+s}, v4, 9, v7")
        A(f"v_add_u32 v{vKR8+s}, 0x20000, v{vKR+s}")
    A("v_lshrrev_b32 v7, 3, v1")
    A("v_lshl_add_u32 v7, v2, 5, v7")
    A("v_mul_u32_u24 v7, 896, v7")
    A("v_and_b32 v6, 7, v1")
    A("v_lshlrev_b32 v15, 1, v10")
    A("v_xor_b32 v6, v6, v15")
    A(f"v_lshl_add_u32 v{vOD}, v6, 4, v7")
    A("v_lshl_add_u32 v7, v3, 2, v8")
    A("v_lshlrev_b32 v7, 7, v7")
    A("v_and_b32 v6, 1, v9")
    A("v_lshlrev_b32 v6, 6, v6")
    A("v_lshrrev_b32 v15, 1, v9")
    A("v_lshl_add_u32 v15, v10, 1, v15")
    A("v_lshl_add_u32 v6, v15, 3, v6")
    A("v_add_u32 v7, v7, v6")
    A("v_lshrrev_b32 v6, 1, v8")
    for u in range(2):
        A(f"v_xor_b32 v15, {u}, v6")
        A(f"v_lshl_add_u32 v{vOR+u}, v15, 5, v7")
        A(f"v_add_u32 v{vOR+2+u}, 0x10000, v{vOR+u}")
        A(f"v_add_u32 v{vOR+4+u}, 0x20000, v{vOR+u}")
    A("v_mul_u32_u24 v7, 28672, v2")
    A("v_lshl_add_u32 v7, v1, 4, v7")
    A("v_lshl_add_u32 v6, v2, 5, v4")
    A("v_cmp_gt_u32 vcc, 112, v6")
    A("v_mov_b32 v6, 0x40000000")
    A("s_nop 0")
    A(f"v_cndmask_b32 v{vPS}, v6, v7, vcc")
    return L

def dma_wq(i, slot, cfg):
    L = [f"s_add_u32 m0, s{sWB}, {slot*SLOT}"]
    for j in range(4):
        so = (32*i + 2*j) * 8192 - j*1024
        L.append(f"s_mov_b32 s{sTMP+(j&1)}, {so}")
        L.append((f"buffer_load_dwordx4 v{vQD+(j&1)}, {sr(sWQ,4)}, s{sTMP+(j&1)} offen offset:{j*1024}{cfg.wnt} lds", f"wq{i}"))
    return L
def dma_wo(hc, slot, cfg):
    L = [f"s_add_u32 m0, s{sWB}, {slot*SLOT}"]
    for j in range(4):
        so = (hc >> 1) * 128 + (128*(hc & 1) + 8*j) * 896 - j*1024
        L.append(f"s_mov_b32 s{sTMP+(j&1)}, {so}")
        L.append((f"buffer_load_dwordx4 v{vOD}, {sr(sWO,4)}, s{sTMP+(j&1)} offen offset:{j*1024}{cfg.wnt} lds", f"wo{hc}"))
    return L
def dma_k(tag, slot, cfg, const=None):
    L = [f"s_add_u32 m0, s{sWB}, {slot*SLOT}"]
    if const is not None: L.append(f"s_mov_b32 s{sKOFF}, {const*SLOT}")
    else: L.append(f"s_add_u32 s{sKOFF}, s{sKOFF}, {SLOT}")
    for j in range(4):
        L.append((f"buffer_load_dwordx4 v{vKD+j}, {sr(sK,4)}, s{sKOFF} offen offset:{j*1024}{cfg.nt} lds", tag))
    return L
def dma_v(tag, slot, cfg, const=None):
    L = [f"s_add_u32 m0, s{sWB}, {slot*SLOT}"]
    if const is not None: L.append(f"s_mov_b32 s{sVOFF}, {const*SLOT}")
    else: L.append(f"s_add_u32 s{sVOFF}, s{sVOFF}, {SLOT}")
    for j in range(4):
        L.append((f"buffer_load_dwordx4 v{vVD+(j&1)}, {sr(sV,4)}, s{sVOFF} offen offset:{j*1024}{cfg.nt} lds", tag))
    return L
def emit(P, L):
    for f in L:
        if callable(f): f()
        elif isinstance(f, tuple): P.I(f[0], f[1])
        else: P.I(f)
def group_dma(L):
    out, cur = [], []
    for f in L:
        cur.append(f)
        if isinstance(f, tuple): out.append(cur); cur = []
    assert not cur
    return out
def place_groups(groups, gaps, start, end):
    n = end - start; k = len(groups)
    for i, g in enumerate(groups):
        gaps[start + (i*n)//k] += g

def xload(m): return (f"buffer_load_dwordx4 {ar(aX+4*m,4)}, v{vX}, {sr(sX,4)}, 0 offen offset:{32*m}", f"x{m}")

PI = {6: 2, 7: 4, 0: 3, 1: 5, 2: 0, 3: 6, 4: 1, 5: 7}

def wq_reads(i):
    slot = PI[i % 8]; F = aV if i % 2 == 0 else aF1
    base = vQR + (4 if slot >= 4 else 0); so = (slot & 3) * SLOT
    L = []
    for m in range(2):
        for t in range(8):
            for u in range(2):
                L.append(f"ds_read_b64_tr_b16 {ar(F+4*(8*m+t)+2*u,2)}, v{base+(t&3)} offset:{so+(16*m+4*u)*512+(t>>2)*256}")
    return L
def wq_mfmas(i):
    F = aV if i % 2 == 0 else aF1
    L = []
    for m in range(2):
        for t in range(8):
            c = "0" if (i == 0 and m == 0) else vr(OO+16*t, 16)
            L.append(f"{MF} {vr(OO+16*t,16)}, {ar(F+4*(8*m+t),4)}, {ar(aX+4*(2*i+m),4)}, {c}")
    return L
def k_reads(slot):
    base, so = (vKR8, (slot-8)*SLOT) if slot >= 8 else (vKR, slot*SLOT)
    return [f"ds_read_b128 {ar(aK+4*s,4)}, v{base+(s&7)} offset:{so+(s>>3)*256}" for s in range(16)]
def qk_mfmas(S):
    return [f"{MF} {vr(S,16)}, {ar(aK+4*s,4)}, {ar(aQ+4*s,4)}, {'0' if s == 0 else vr(S,16)}" for s in range(16)]
def v_reads(vslot):
    L = []
    for m in range(2):
        for t in range(8):
            for u in range(2):
                L.append(f"ds_read_b64_tr_b16 {ar(aV+4*(8*m+t)+2*u,2)}, v{vVR+(t&3)} offset:{vslot*SLOT+(16*m+8*u)*512+(t>>2)*256}")
    return L
def pv_mfmas():
    return [f"{MF} {vr(OO+16*t,16)}, {ar(aV+4*(8*m+t),4)}, {vr(PP+4*m,4)}, {vr(OO+16*t,16)}" for m in range(2) for t in range(8)]
def max_ops(S):
    L = [f"v_max3_f32 v{vTM}, v{S}, v{S+1}, v{S+2}"]
    for i in range(6): L.append(f"v_max3_f32 v{vTM}, v{vTM}, v{S+3+2*i}, v{S+4+2*i}")
    L.append(f"v_max_f32 v{vTM}, v{vTM}, v{S+15}")
    return L

def prologue(P, cfg):
    I = P.I
    setup(P, cfg)
    for i in range(8):
        emit(P, dma_wq(i, PI[i], cfg))
        emit(P, [xload(2*i), xload(2*i+1)])
        if i == 1: setup2(P, cfg)
    emit(P, dma_k("K0", 8, cfg, const=0))
    emit(P, dma_k("K1", 9, cfg, const=1))
    setup3(P, cfg)
    extra = setup4()
    refill = {7: dma_k("K2", 2, cfg, const=2), 8: dma_v("V0", 4, cfg, const=0), 9: dma_k("K3", 3, cfg, const=3),
              10: dma_v("V1", 5, cfg, const=1), 11: dma_k("K4", 0, cfg, const=4), 12: dma_v("V2", 6, cfg, const=2)}
    for i in range(1, 7): refill[i] = dma_wq(i+7, PI[(i+7) % 8], cfg)
    for i in range(15):
        tags = {f"wq{i}"} if i < 14 else {"K0", "K1"}
        P.wait_tags(tags, lg=0)
        I("s_barrier")
        if i == 0:
            stamp(P, cfg, 1)
            emit(P, wq_reads(0))
            emit(P, extra)
            continue
        gaps = [[] for _ in range(16)]
        if i < 14: spread(wq_reads(i), 16, 0, 11, gaps)
        else: spread(k_reads(8), 16, 0, 11, gaps)
        if i in refill: place_groups(group_dma(refill[i]), gaps, 10, 16)
        if 1 <= i <= 3:
            for q in range(4): gaps[11 + q].append(xload(16 + 4*(i-1) + q))
        interleave(P, wq_mfmas(i-1), gaps)
    I("s_nop 3")
    for t in range(8):
        for k in range(8):
            I(f"v_cvt_pk_bf16_f32 v{S1+(k&7)+8*(t&1)}, v{OO+16*t+2*k}, v{OO+16*t+2*k+1}")
        for k in range(8):
            I(f"v_accvgpr_write_b32 a{aQ+8*t+k}, v{S1+(k&7)+8*(t&1)}")
    I("s_nop 0")
    stamp(P, cfg, 2)
    gaps = [[] for _ in range(16)]
    kr = k_reads(9)
    for s in range(16):
        gaps[s].append(kr[s])
        for z in range(4): gaps[s].append(f"v_mov_b64 v[{OO+8*s+2*z}:{OO+8*s+2*z+1}], 0")
    interleave(P, qk_mfmas(S0), gaps)
    I(f"v_mov_b32 v{vL0}, 0"); I(f"v_mov_b32 v{vL1}, 0")
    I("s_nop 5")
    emit(P, max_ops(S0))
    I(f"v_mov_b32 v{vT1}, v{vTM}")
    I("s_nop 1")
    I(f"v_permlane32_swap_b32 v{vTM}, v{vT1}")
    I(f"v_max_f32 v{vTM}, v{vTM}, v{vT1}")
    I(f"v_mul_f32 v{vMC}, s{sC}, v{vTM}")
    I(f"v_add_f32 v{vTHR}, s{sTC}, v{vTM}")

def iteration(P, cfg, t, tm, Sc, Sn, need, dmas, do_qk=True, do_kread=True, uid=""):
    I = P.I
    P.wait_tags(need, lg=0)
    I("s_barrier")
    fma = [f"v_fma_f32 v{Sc+i}, v{Sc+i}, s{sC}, -v{vMC}" for i in range(16)]
    ex = [f"v_exp_f32 v{Sc+i}, v{Sc+i}" for i in range(16)]
    add = [f"v_add_f32 v{(vL0, vL1)[i&1]}, v{(vL0, vL1)[i&1]}, v{Sc+i}" for i in range(16)]
    cvt = [f"v_cvt_pk_bf16_f32 v{PP+i}, v{Sc+2*i}, v{Sc+2*i+1}" for i in range(8)]
    vrd = v_reads(tm)
    g1 = [[] for _ in range(16)]; g2 = [[] for _ in range(16)]
    groups = [g for d in dmas for g in group_dma(d)]
    if do_qk:
        for g in range(16):
            g1[g] += vrd[2*g:2*g+2]
        for i in range(14):
            g1[i].append(fma[i]); g1[i+1].append(ex[i])
        g1[14].append(fma[14]); g1[15].append(fma[15])
        for k in range(4): g1[10+k].append(cvt[k])
        g2[0].append(ex[14]); g2[1].append(ex[15])
        for k in range(4): g2[2+k].append(cvt[4+k])
        interleave(P, qk_mfmas(Sn), g1)
    else:
        for i in range(16):
            emit(P, vrd[2*i:2*i+2])
            I(fma[i])
            if i: I(ex[i-1])
        I(ex[15])
        for k in range(8): I(cvt[k])
        I("s_nop 0")
    if do_kread: spread(k_reads((tm+2) & 3), 16, 0, 10, g2)
    spread(add, 16, 0, 16, g2)
    if do_qk:
        spread(max_ops(Sn), 16, 5, 13, g2)
        g2[13].append(f"v_cmp_gt_f32 vcc, v{vTM}, v{vTHR}")
    place_groups(groups, g2, 8 if len(groups) <= 8 else 0, 16)
    interleave(P, pv_mfmas(), g2)
    if do_qk:
        I(f"s_cbranch_vccz L_skip{uid}")
        I(f"s_call_b64 {sr(sRET,2)}, L_rescale")
        P.label(f"L_skip{uid}")

def rescale_sub(P):
    I = P.I
    P.label("L_rescale")
    I(f"v_mov_b32 v{vT1}, v{vTM}")
    I("s_nop 1")
    I(f"v_permlane32_swap_b32 v{vTM}, v{vT1}")
    I(f"v_max_f32 v{vTM}, v{vTM}, v{vT1}")
    I(f"v_mul_f32 v{vT1}, s{sC}, v{vTM}")
    I(f"v_max_f32 v{vT1}, v{vT1}, v{vMC}")
    I(f"v_sub_f32 v{vT2}, v{vMC}, v{vT1}")
    I(f"v_exp_f32 v{vT2}, v{vT2}")
    I(f"v_mov_b32 v{vMC}, v{vT1}")
    I(f"v_mov_b32 v{vT3}, s{sTC}")
    I(f"v_fma_f32 v{vTHR}, v{vT1}, s{sRC}, v{vT3}")
    I(f"v_mul_f32 v{vL0}, v{vL0}, v{vT2}")
    I(f"v_mul_f32 v{vL1}, v{vL1}, v{vT2}")
    I("s_nop 7")
    for r in range(128):
        I(f"v_mul_f32 v{OO+r}, v{OO+r}, v{vT2}")
    I("s_nop 1")
    I(f"s_setpc_b64 {sr(sRET,2)}")

WOSLOT = {0: 8, 1: 9, 2: 1, 3: 0, 4: 2, 5: 4, 6: 3, 7: 5, 8: 6, 9: 7, 10: 8, 11: 9, 12: 1, 13: 0}
def wo_reads(hc):
    slot = WOSLOT[hc]; F = aV if hc % 2 == 0 else aF1
    base = vOR + 2*(slot >> 2); so = (slot & 3) * SLOT
    L = []
    for s in range(8):
        for u in range(2):
            for k in range(2):
                L.append(f"ds_read_b64_tr_b16 {ar(F+4*(2*s+u)+2*k,2)}, v{base+u} offset:{so+s*2048+k*1024}")
    return L
def wo_mfmas(hc):
    F = aV if hc % 2 == 0 else aF1
    acc = (S0, 192)[(hc >> 1) & 1]
    L = []
    for s in range(8):
        for u in range(2):
            c = "0" if (hc % 2 == 0 and s == 0) else vr(acc+16*u, 16)
            L.append(f"{MF} {vr(acc+16*u,16)}, {ar(F+4*(2*s+u),4)}, {vr(OO+4*(8*(hc&1)+s),4)}, {c}")
    return L
def norm_ops(t):
    L = [f"v_mul_f32 v{OO+16*t+k}, v{OO+16*t+k}, v{vT1}" for k in range(16)]
    L += [f"v_cvt_pk_bf16_f32 v{OO+8*t+k}, v{OO+16*t+2*k}, v{OO+16*t+2*k+1}" for k in range(8)]
    return L
def out_ops(c, cfg):
    acc = (S0, 192)[c & 1]; T = 224 + 16*(c & 1)
    L = []
    for q in range(4):
        for k in range(4): L.append(f"v_cvt_pk_bf16_f32 v{T+4*q+k}, v{acc+8*q+2*k}, v{acc+8*q+2*k+1}")
        if q == 0: L.append(f"s_mov_b32 s69, {c*4096}")
        L.append((f"buffer_store_dwordx4 {vr(T+4*q,4)}, v{vPS}, {sr(sP,4)}, s69 offen offset:{q*1024}{cfg.pst}", f"st{c}"))
    return L

def epilogue(P, cfg):
    I = P.I
    stamp(P, cfg, 3)
    I(f"v_add_f32 v{vL0}, v{vL0}, v{vL1}")
    I(f"v_mov_b32 v{vT1}, v{vL0}")
    I("s_nop 1")
    I(f"v_permlane32_swap_b32 v{vL0}, v{vT1}")
    I(f"v_add_f32 v{vL0}, v{vL0}, v{vT1}")
    I(f"v_rcp_f32 v{vT1}, v{vL0}")
    for i in range(15):
        P.wait_tags({f"wo{i}"} if i < 14 else set(), lg=0)
        if i < 14: I("s_barrier")
        if i == 0:
            rd = wo_reads(0)
            emit(P, dma_wo(9, WOSLOT[9], cfg))
            emit(P, rd[:8])
            for t in range(4):
                emit(P, norm_ops(t))
                emit(P, rd[8+6*t:14+6*t])
            continue
        gaps = [[] for _ in range(16)]
        if i < 14: spread(wo_reads(i), 16, 0, 11, gaps)
        if i == 1: spread(sum((norm_ops(t) for t in range(4, 8)), []), 16, 0, 16, gaps)
        if 1 <= i <= 4: place_groups(group_dma(dma_wo(i+9, WOSLOT[i+9], cfg)), gaps, 11, 16)
        if i >= 3 and i % 2 == 1:
            spread(out_ops((i-3)//2, cfg), 16, 3, 16, gaps)
        interleave(P, wo_mfmas(i-1), gaps)
    I("s_nop 11")
    emit(P, out_ops(6, cfg))
    stamp(P, cfg, 4)

def stamp_out(P, cfg, nst, base_s):
    if not cfg.stamp: return
    I = P.I
    P.wait(vm=0)
    I(f"s_memrealtime {sr(sST+2*5,2)}")
    P.items.append(Ins("s_waitcnt lgkmcnt(0)"))
    I("s_lshl_b32 s3, s2, 6")
    I(f"s_add_u32 s3, s3, {(480<<20)+base_s}")
    I("s_add_u32 s32, s32, s3"); I("s_addc_u32 s33, s33, 0")
    for i in range(12): I(f"v_mov_b32 v{4+i}, s{sST+i}")
    I("v_mov_b32 v3, 0")
    I("v_cmp_eq_u32 vcc, 0, v0")
    I("s_and_saveexec_b64 s[90:91], vcc")
    I("s_cbranch_execz L_end")
    I("global_store_dwordx4 v3, v[4:7], s[32:33]")
    I("global_store_dwordx4 v3, v[8:11], s[32:33] offset:16")
    I("global_store_dwordx4 v3, v[12:15], s[32:33] offset:32")

def main_kernel(cfg):
    P = Prog()
    prologue(P, cfg)
    pro_end = len(P.items)
    entry_vm = [t for _, t in P.vm][-16:]
    assert entry_vm == ["K3"]*4 + ["V1"]*4 + ["K4"]*4 + ["V2"]*4, entry_vm
    P.I(f"s_mov_b32 s{sCNT}, 15")
    P.wait(lg=0)
    P.raw(".p2align 3")
    P.label("L_loop")
    l0 = len(P.items)
    P.lg = [(set(), 'unknown')]
    vm_in = list(P.vm)
    P.vm = [(set(), f"old")]*8 + P.vm[-16:]
    P.vm = [(set(), "K2")]*4 + [(set(), "V0")]*4 + P.vm[-16:]
    for t in range(4):
        Sc, Sn = (S0, S1) if t % 2 == 0 else (S1, S0)
        iteration(P, cfg, t, t, Sc, Sn, {f"V{t}", f"K{t+2}"},
                  [dma_k(f"K{t+5}", (t+1) & 3, cfg), dma_v(f"V{t+3}", 4 + ((t+3) & 3), cfg)], uid=f"_l{t}")
    assert [t for _, t in P.vm][-16:] == ["K7"]*4 + ["V5"]*4 + ["K8"]*4 + ["V6"]*4
    P.I(f"s_sub_u32 s{sCNT}, s{sCNT}, 1")
    P.I(f"s_cmp_lg_u32 s{sCNT}, 0")
    P.I("s_cbranch_scc1 L_loop")
    l1 = len(P.items)
    P.vm = [(set(), x) for x in ["K62"]*4 + ["V60"]*4 + ["K63"]*4 + ["V61"]*4 + ["K64"]*4 + ["V62"]*4]
    W = lambda hc: dma_wo(hc, WOSLOT[hc], cfg)
    iteration(P, cfg, 60, 0, S0, S1, {"V60", "K62"}, [dma_v("V63", 7, cfg), W(0), W(1), W(2)], uid="_60")
    iteration(P, cfg, 61, 1, S1, S0, {"V61", "K63", "K64"}, [W(3), W(4), W(5)], uid="_61")
    iteration(P, cfg, 62, 2, S0, S1, {"V62"}, [W(6), W(7)], do_kread=False, uid="_62")
    iteration(P, cfg, 63, 3, S1, S0, {"V63"}, [W(8)], do_qk=False, do_kread=False, uid="_63")
    epilogue(P, cfg)
    stamp_out(P, cfg, 6, 0)
    P.label("L_end")
    P.I("s_endpgm")
    e0 = len(P.items)
    rescale_sub(P)
    ins = lambda a, b: [x for x in P.items[a:b] if isinstance(x, Ins)]
    errs = check_hazards(ins(0, e0), "linear")
    errs += check_hazards(ins(l1 - 60, l1) + ins(l0, l0 + 60), "backedge")
    sub = ins(e0, len(P.items))
    errs += check_hazards([Ins(x) for x in pv_mfmas()[-3:]] + [Ins("s_cbranch_vccz L"), Ins("s_call_b64 s[70:71], L")] + sub + [Ins("s_barrier")] + [Ins(x) for x in qk_mfmas(S0)[:2]], "rescale")
    for e in errs: print("HAZARD", e, file=sys.stderr)
    assert not errs
    return P

def reduce_kernel(cfg):
    P = Prog(); I = P.I
    I("s_cmp_ge_u32 s2, 448")
    I("s_cbranch_scc1 L_end2")
    if cfg.stamp: I(f"s_memrealtime {sr(sST,2)}")
    I("s_load_dwordx2 s[4:5], s[0:1], 80")
    I("s_load_dwordx2 s[32:33], s[0:1], 96")
    I(f"s_mul_hi_u32 s8, s2, {(2**32 + 27)//28}")
    I("s_mul_i32 s9, s8, 28"); I("s_sub_u32 s9, s2, s9")
    I(f"s_mul_hi_u32 s10, s9, {(2**32 + 6)//7}")
    I("s_mul_i32 s11, s10, 7"); I("s_sub_u32 s11, s9, s11")
    I("v_lshlrev_b32 v1, 4, v0")
    I("s_lshl_b32 s12, s9, 12")
    I("v_add_u32 v1, s12, v1")
    I("v_and_b32 v2, 31, v0")
    I("s_lshl_b32 s13, s10, 5")
    I("v_add_u32 v2, s13, v2")
    I("v_cmp_gt_u32 vcc, 112, v2")
    I("v_mov_b32 v3, 0x40000000")
    I("v_bfe_u32 v4, v0, 5, 1")
    I("v_cndmask_b32 v1, v3, v1, vcc")
    I("v_lshrrev_b32 v5, 6, v0")
    I("v_mul_u32_u24 v2, 1792, v2")
    I("v_lshl_add_u32 v2, v4, 6, v2")
    I("v_lshl_add_u32 v2, v5, 4, v2")
    I("v_cndmask_b32 v2, v3, v2, vcc")
    P.items.append(Ins("s_waitcnt lgkmcnt(0)"))
    I("s_mul_i32 s14, s8, %d" % (16*114688))
    I("s_add_u32 s16, s32, s14"); I("s_addc_u32 s17, s33, 0"); I(f"s_mov_b32 s18, {16*114688}"); I("s_mov_b32 s19, 0x20000")
    for h in range(16):
        I(f"s_mov_b32 s{40+h}, {h*114688}")
    for h in range(16):
        I(f"buffer_load_dwordx4 {vr(16+4*h,4)}, v1, s[16:19], s{40+h} offen{cfg.pld}")
    I("s_and_b32 s14, s8, 7"); I("s_mul_i32 s14, s14, 200704")
    I("s_lshr_b32 s15, s8, 3"); I("s_mul_i32 s15, s15, 896"); I("s_add_u32 s14, s14, s15")
    I("s_lshl_b32 s15, s11, 7"); I("s_add_u32 s14, s14, s15")
    I("s_add_u32 s20, s4, s14"); I("s_addc_u32 s21, s5, 0")
    I(f"s_mov_b32 s22, {111*1792+128}"); I("s_mov_b32 s23, 0x20000")
    for h in range(16):
        for k in range(4):
            r = 16 + 4*h + k
            if h == 0:
                I(f"v_lshlrev_b32 v{8+2*k}, 16, v{r}")
                I(f"v_and_b32 v{9+2*k}, 0xffff0000, v{r}")
            else:
                I(f"v_lshlrev_b32 v6, 16, v{r}")
                I(f"v_and_b32 v7, 0xffff0000, v{r}")
                I(f"v_add_f32 v{8+2*k}, v{8+2*k}, v6")
                I(f"v_add_f32 v{9+2*k}, v{9+2*k}, v7")
    for k in range(4): I(f"v_cvt_pk_bf16_f32 v{16+k}, v{8+2*k}, v{9+2*k}")
    I("buffer_store_dwordx4 v[16:19], v2, s[20:23], 0 offen")
    if cfg.stamp:
        P.wait(vm=0)
        I(f"s_memrealtime {sr(sST+2,2)}")
        P.items.append(Ins("s_waitcnt lgkmcnt(0)"))
        I("s_lshl_b32 s3, s2, 6")
        I(f"s_add_u32 s3, s3, {(480<<20)+256*64}")
        I("s_add_u32 s32, s32, s3"); I("s_addc_u32 s33, s33, 0")
        for i in range(4): I(f"v_mov_b32 v{4+i}, s{sST+i}")
        I("v_mov_b32 v3, 0")
        I("v_cmp_eq_u32 vcc, 0, v0")
        I("s_and_saveexec_b64 s[90:91], vcc")
        I("s_cbranch_execz L_end2")
        I("global_store_dwordx4 v3, v[4:7], s[32:33]")
    P.label("L_end2")
    I("s_endpgm")
    errs = check_hazards([x for x in P.items if isinstance(x, Ins)], "reduce")
    for e in errs: print("HAZARD", e, file=sys.stderr)
    assert not errs
    return P

HEADER = open("concat_heads__gqa_block_cached__mha_block_cached__near_ridge.s.ref").read().split("; Override launch")[0]

def kd(name, vgpr, acc, sgpr=102):
    return f""".p2align 6
.amdhsa_kernel {name}
  .amdhsa_next_free_vgpr {vgpr}
  .amdhsa_next_free_sgpr {sgpr}
  .amdhsa_accum_offset {acc}
  .amdhsa_group_segment_fixed_size 0
  .amdhsa_kernarg_size 104
  .amdhsa_user_sgpr_count 2
  .amdhsa_user_sgpr_kernarg_segment_ptr 1
  .amdhsa_system_sgpr_workgroup_id_x 1
  .amdhsa_float_denorm_mode_32 3
.end_amdhsa_kernel
"""

def build(cfg):
    out = HEADER
    out += f"; @launch kernel={KN} grid=(256,1,1) block=(256,1,1) lds=163840\n"
    out += f"; @launch kernel={K2} grid=(448,1,1) block=(256,1,1) lds=0\n"
    out += '.amdgcn_target "amdgcn-amd-amdhsa--gfx950"\n.text\n'
    out += f".globl {KN}\n.p2align 8\n.type {KN},@function\n{KN}:\n"
    out += main_kernel(cfg).text()
    out += f".globl {K2}\n.p2align 8\n.type {K2},@function\n{K2}:\n"
    out += reduce_kernel(cfg).text()
    out += '.section .rodata,"a"\n'
    out += kd(KN, 512, 256) + kd(K2, 80, 80)
    return out

if __name__ == "__main__":
    kw = {}
    outp = sys.argv[1]
    for a in sys.argv[2:]:
        k, v = a.split("=", 1)
        try: v = eval(v)
        except Exception: pass
        kw[k] = v
    open(outp, "w").write(build(Cfg(**kw)))
```

```python
import sys, struct, math
from asmlib import *

KN = "concat_heads__gqa_block_cached__mha_block_cached__near_ridge_kernel"
K2 = "reduce_kernel"

def f32bits(x): return struct.unpack('<I', struct.pack('<f', x))[0]

class Cfg:
    stamp = False
    nt = " nt"
    wnt = ""
    pst = ""
    pld = ""
    T = 8.0
    def __init__(self, **kw):
        for k, v in kw.items(): setattr(self, k, v)

S0, S1, PP = 16, 32, 48
vMC, vTHR, vL0, vTM, vL1, vT1, vT2, vT3 = 56, 57, 58, 59, 60, 61, 62, 63
vKR = 64
vVR = 72
vKD = 76
vVD = 80
vQD = 82
vQR = 84
vX = 92
vOD = 93
vOR = 94
vPS = 100
vKR8 = 104
OO = 128
aV, aK, aQ, aF1, aX = 0, 64, 128, 192, 64
sX, sK, sV, sWQ, sWO, sP = 36, 40, 44, 48, 52, 56
sKOFF, sVOFF, sWB, sCNT, sC, sRC, sTC, sTMP, sTMP2 = 60, 61, 62, 63, 64, 65, 66, 67, 68
sRET = 70
sST = 72
SLOT = 16384

def vr(b, n): return f"v[{b}:{b+n-1}]"
def ar(b, n): return f"a[{b}:{b+n-1}]"
def sr(b, n): return f"s[{b}:{b+n-1}]"
MF = "v_mfma_f32_32x32x16_bf16"

def stamp(P, cfg, i):
    if cfg.stamp:
        P.I(f"s_memrealtime {sr(sST+2*i,2)}")

def setup(P, cfg):
    I = P.I
    I("s_cmp_ge_u32 s2, 256")
    I("s_cbranch_scc1 L_end")
    stamp(P, cfg, 0)
    I("s_load_dwordx16 s[8:23], s[0:1], 0")
    I("s_load_dwordx8 s[24:31], s[0:1], 64")
    I("s_load_dwordx2 s[32:33], s[0:1], 96")
    I("s_and_b32 s3, s2, 7")
    I("s_lshr_b32 s7, s2, 3")
    I("s_and_b32 s4, s7, 1")
    I("s_lshl_b32 s3, s3, 1")
    I("s_or_b32 s4, s4, s3")
    I("s_bfe_u32 s5, s7, 0x10001")
    I("s_lshr_b32 s6, s7, 2")
    I("v_and_b32 v1, 63, v0")
    I("v_lshrrev_b32 v2, 6, v0")
    I("v_lshrrev_b32 v3, 5, v1")
    I("v_readfirstlane_b32 s34, v2")
    I("v_and_b32 v4, 31, v1")
    I("v_lshlrev_b32 v5, 3, v2")
    I("v_add_u32 v5, v5, v3")
    I("s_lshl_b32 s62, s34, 12")
    I("v_lshl_add_u32 v6, v2, 5, v4")
    I("v_mul_u32_u24 v6, 896, v6")
    I(f"v_lshl_add_u32 v{vX}, v3, 4, v6")
    for jp in range(2):
        I(f"v_lshl_add_u32 v7, v3, 2, {8*jp}")
        I("v_xor_b32 v7, v7, v4")
        I("v_lshlrev_b32 v7, 4, v7")
        I(f"v_lshl_add_u32 v{vQD+jp}, v5, 13, v7")
        I(f"v_lshl_add_u32 v{vVD+jp}, v5, 9, v7")
    P.items.append(Ins("s_waitcnt lgkmcnt(0)"))
    I("s_cmp_eq_u32 s5, 0")
    I("s_cselect_b64 s[8:9], s[8:9], s[18:19]")
    I("s_cselect_b64 s[10:11], s[10:11], s[20:21]")
    I("s_cselect_b64 s[12:13], s[12:13], s[22:23]")
    I("s_cselect_b64 s[14:15], s[14:15], s[24:25]")
    I("s_cselect_b64 s[16:17], s[16:17], s[26:27]")
    I("s_lshl_b32 s3, s4, 9")
    I(f"s_add_u32 s{sWQ}, s14, s3"); I(f"s_addc_u32 s{sWQ+1}, s15, 0")
    I(f"s_mov_b32 s{sWQ+2}, {447*8192+512}"); I(f"s_mov_b32 s{sWQ+3}, 0x20000")
    I("s_mul_i32 s3, s6, 100352")
    I(f"s_add_u32 s{sX}, s8, s3"); I(f"s_addc_u32 s{sX+1}, s9, 0")
    I(f"s_mov_b32 s{sX+2}, 100352"); I(f"s_mov_b32 s{sX+3}, 0x20000")

def setup2(P, cfg):
    I = P.I
    I("s_lshl_b32 s3, s6, 4"); I("s_add_u32 s3, s3, s4")
    I("s_lshr_b32 s7, s3, 1")
    I("s_cmp_eq_u32 s5, 0")
    I("s_cselect_b32 s3, s7, s3")
    I("s_lshl_b32 s3, s3, 20")
    I(f"s_add_u32 s{sK}, s10, s3"); I(f"s_addc_u32 s{sK+1}, s11, 0")
    I(f"s_mov_b32 s{sK+2}, 0x100000"); I(f"s_mov_b32 s{sK+3}, 0x20000")
    I(f"s_add_u32 s{sV}, s12, s3"); I(f"s_addc_u32 s{sV+1}, s13, 0")
    I(f"s_mov_b32 s{sV+2}, 0x100000"); I(f"s_mov_b32 s{sV+3}, 0x20000")
    for j in range(4):
        I(f"v_add_u32 v7, {2*j}, v5")
        I("v_and_b32 v7, 15, v7")
        I("v_xor_b32 v7, v7, v4")
        I("v_lshlrev_b32 v7, 4, v7")
        I(f"v_lshl_add_u32 v{vKD+j}, v5, 9, v7")

def setup3(P, cfg):
    I = P.I
    I("s_mul_i32 s3, s4, 229376")
    I(f"s_add_u32 s{sWO}, s16, s3"); I(f"s_addc_u32 s{sWO+1}, s17, 0")
    I(f"s_mov_b32 s{sWO+2}, 229376"); I(f"s_mov_b32 s{sWO+3}, 0x20000")
    I("s_lshl_b32 s3, s5, 3"); I("s_add_u32 s3, s3, s6"); I("s_lshl_b32 s3, s3, 4"); I("s_add_u32 s3, s3, s4")
    I("s_mul_i32 s3, s3, 114688")
    I(f"s_add_u32 s{sP}, s32, s3"); I(f"s_addc_u32 s{sP+1}, s33, 0")
    I(f"s_mov_b32 s{sP+2}, 114688"); I(f"s_mov_b32 s{sP+3}, 0x20000")
    c = math.log2(math.e) / 16.0
    I(f"s_mov_b32 s{sC}, {f32bits(c):#x}")
    I(f"s_mov_b32 s{sRC}, {f32bits(1.0/c):#x}")
    I(f"s_mov_b32 s{sTC}, {f32bits(cfg.T/c):#x}")
    I("v_bfe_u32 v8, v1, 2, 2")
    I("v_and_b32 v9, 3, v1")
    I("v_bfe_u32 v10, v1, 4, 1")
    I("v_lshl_add_u32 v11, v10, 2, v9")
    I("v_lshlrev_b32 v11, 3, v11")
    I("v_and_b32 v12, 1, v9"); I("v_lshlrev_b32 v12, 1, v12"); I("v_lshrrev_b32 v13, 1, v9"); I("v_or_b32 v12, v12, v13")
    I("v_lshl_add_u32 v12, v10, 2, v12"); I("v_lshlrev_b32 v12, 3, v12")
    I("v_lshl_add_u32 v13, v3, 2, v8")
    I("v_lshlrev_b32 v13, 9, v13")
    I("v_add_u32 v13, v13, v11")
    I("v_add_u32 v13, 0x10000, v13")
    I("v_lshl_add_u32 v14, v3, 3, v8")
    I("v_lshlrev_b32 v14, 9, v14")
    I("v_add_u32 v14, v14, v12")
    for tt in range(4):
        I(f"v_xor_b32 v7, {tt}, v8")
        I(f"v_lshl_add_u32 v{vVR+tt}, v7, 6, v13")
        I(f"v_lshl_add_u32 v{vQR+tt}, v7, 6, v14")
        I(f"v_add_u32 v{vQR+4+tt}, 0x10000, v{vQR+tt}")

def setup4():
    L = []
    A = L.append
    A("v_and_b32 v15, 15, v4")
    A("v_xor_b32 v15, v15, v3")
    for s in range(8):
        A(f"v_xor_b32 v7, {2*s}, v15")
        A("v_lshlrev_b32 v7, 4, v7")
        A(f"v_lshl_add_u32 v{vKR+s}, v4, 9, v7")
        A(f"v_add_u32 v{vKR8+s}, 0x20000, v{vKR+s}")
    A("v_lshrrev_b32 v7, 3, v1")
    A("v_lshl_add_u32 v7, v2, 5, v7")
    A("v_mul_u32_u24 v7, 896, v7")
    A("v_and_b32 v6, 7, v1")
    A("v_lshlrev_b32 v15, 1, v10")
    A("v_xor_b32 v6, v6, v15")
    A(f"v_lshl_add_u32 v{vOD}, v6, 4, v7")
    A("v_lshl_add_u32 v7, v3, 2, v8")
    A("v_lshlrev_b32 v7, 7, v7")
    A("v_and_b32 v6, 1, v9")
    A("v_lshlrev_b32 v6, 6, v6")
    A("v_lshrrev_b32 v15, 1, v9")
    A("v_lshl_add_u32 v15, v10, 1, v15")
    A("v_lshl_add_u32 v6, v15, 3, v6")
    A("v_add_u32 v7, v7, v6")
    A("v_lshrrev_b32 v6, 1, v8")
    for u in range(2):
        A(f"v_xor_b32 v15, {u}, v6")
        A(f"v_lshl_add_u32 v{vOR+u}, v15, 5, v7")
        A(f"v_add_u32 v{vOR+2+u}, 0x10000, v{vOR+u}")
        A(f"v_add_u32 v{vOR+4+u}, 0x20000, v{vOR+u}")
    A("v_mul_u32_u24 v7, 28672, v2")
    A("v_lshl_add_u32 v7, v1, 4, v7")
    A("v_lshl_add_u32 v6, v2, 5, v4")
    A("v_cmp_gt_u32 vcc, 112, v6")
    A("v_mov_b32 v6, 0x40000000")
    A("s_nop 0")
    A(f"v_cndmask_b32 v{vPS}, v6, v7, vcc")
    return L

def dma_wq(i, slot, cfg):
    L = [f"s_add_u32 m0, s{sWB}, {slot*SLOT}"]
    for j in range(4):
        so = (32*i + 2*j) * 8192 - j*1024
        L.append(f"s_mov_b32 s{sTMP+(j&1)}, {so}")
        L.append((f"buffer_load_dwordx4 v{vQD+(j&1)}, {sr(sWQ,4)}, s{sTMP+(j&1)} offen offset:{j*1024}{cfg.wnt} lds", f"wq{i}"))
    return L
def dma_wo(hc, slot, cfg):
    L = [f"s_add_u32 m0, s{sWB}, {slot*SLOT}"]
    for j in range(4):
        so = (hc >> 1) * 128 + (128*(hc & 1) + 8*j) * 896 - j*1024
        L.append(f"s_mov_b32 s{sTMP+(j&1)}, {so}")
        L.append((f"buffer_load_dwordx4 v{vOD}, {sr(sWO,4)}, s{sTMP+(j&1)} offen offset:{j*1024}{cfg.wnt} lds", f"wo{hc}"))
    return L
def dma_k(tag, slot, cfg, const=None):
    L = [f"s_add_u32 m0, s{sWB}, {slot*SLOT}"]
    if const is not None: L.append(f"s_mov_b32 s{sKOFF}, {const*SLOT}")
    else: L.append(f"s_add_u32 s{sKOFF}, s{sKOFF}, {SLOT}")
    for j in range(4):
        L.append((f"buffer_load_dwordx4 v{vKD+j}, {sr(sK,4)}, s{sKOFF} offen offset:{j*1024}{cfg.nt} lds", tag))
    return L
def dma_v(tag, slot, cfg, const=None):
    L = [f"s_add_u32 m0, s{sWB}, {slot*SLOT}"]
    if const is not None: L.append(f"s_mov_b32 s{sVOFF}, {const*SLOT}")
    else: L.append(f"s_add_u32 s{sVOFF}, s{sVOFF}, {SLOT}")
    for j in range(4):
        L.append((f"buffer_load_dwordx4 v{vVD+(j&1)}, {sr(sV,4)}, s{sVOFF} offen offset:{j*1024}{cfg.nt} lds", tag))
    return L
def emit(P, L):
    for f in L:
        if callable(f): f()
        elif isinstance(f, tuple): P.I(f[0], f[1])
        else: P.I(f)
def group_dma(L):
    out, cur = [], []
    for f in L:
        cur.append(f)
        if isinstance(f, tuple): out.append(cur); cur = []
    assert not cur
    return out
def place_groups(groups, gaps, start, end):
    n = end - start; k = len(groups)
    for i, g in enumerate(groups):
        gaps[start + (i*n)//k] += g

XNT = ""
def xload(m): return (f"buffer_load_dwordx4 {ar(aX+4*m,4)}, v{vX}, {sr(sX,4)}, 0 offen offset:{32*m}{XNT}", f"x{m}")

PI = {6: 2, 7: 4, 0: 3, 1: 5, 2: 0, 3: 6, 4: 1, 5: 7}

def wq_reads(i):
    slot = PI[i % 8]; F = aV if i % 2 == 0 else aF1
    base = vQR + (4 if slot >= 4 else 0); so = (slot & 3) * SLOT
    L = []
    for m in range(2):
        for t in range(8):
            for u in range(2):
                L.append(f"ds_read_b64_tr_b16 {ar(F+4*(8*m+t)+2*u,2)}, v{base+(t&3)} offset:{so+(16*m+4*u)*512+(t>>2)*256}")
    return L
def wq_mfmas(i):
    F = aV if i % 2 == 0 else aF1
    L = []
    for m in range(2):
        for t in range(8):
            c = "0" if (i == 0 and m == 0) else vr(OO+16*t, 16)
            L.append(f"{MF} {vr(OO+16*t,16)}, {ar(F+4*(8*m+t),4)}, {ar(aX+4*(2*i+m),4)}, {c}")
    return L
def k_reads(slot):
    base, so = (vKR8, (slot-8)*SLOT) if slot >= 8 else (vKR, slot*SLOT)
    return [f"ds_read_b128 {ar(aK+4*s,4)}, v{base+(s&7)} offset:{so+(s>>3)*256}" for s in range(16)]
def qk_mfmas(S):
    return [f"{MF} {vr(S,16)}, {ar(aK+4*s,4)}, {ar(aQ+4*s,4)}, {'0' if s == 0 else vr(S,16)}" for s in range(16)]
def v_reads(vslot):
    L = []
    for m in range(2):
        for t in range(8):
            for u in range(2):
                L.append(f"ds_read_b64_tr_b16 {ar(aV+4*(8*m+t)+2*u,2)}, v{vVR+(t&3)} offset:{vslot*SLOT+(16*m+8*u)*512+(t>>2)*256}")
    return L
def pv_mfmas():
    return [f"{MF} {vr(OO+16*t,16)}, {ar(aV+4*(8*m+t),4)}, {vr(PP+4*m,4)}, {vr(OO+16*t,16)}" for m in range(2) for t in range(8)]
def max_ops(S):
    L = [f"v_max3_f32 v{vTM}, v{S}, v{S+1}, v{S+2}"]
    for i in range(6): L.append(f"v_max3_f32 v{vTM}, v{vTM}, v{S+3+2*i}, v{S+4+2*i}")
    L.append(f"v_max_f32 v{vTM}, v{vTM}, v{S+15}")
    return L

def prologue(P, cfg):
    I = P.I
    setup(P, cfg)
    for i in range(8):
        emit(P, dma_wq(i, PI[i], cfg))
        emit(P, [xload(2*i), xload(2*i+1)])
        if i == 1: setup2(P, cfg)
    emit(P, dma_k("K0", 8, cfg, const=0))
    emit(P, dma_k("K1", 9, cfg, const=1))
    setup3(P, cfg)
    extra = setup4()
    refill = {7: dma_k("K2", 2, cfg, const=2), 8: dma_v("V0", 4, cfg, const=0), 9: dma_k("K3", 3, cfg, const=3),
              10: dma_v("V1", 5, cfg, const=1), 11: dma_k("K4", 0, cfg, const=4), 12: dma_v("V2", 6, cfg, const=2)}
    for i in range(1, 7): refill[i] = dma_wq(i+7, PI[(i+7) % 8], cfg)
    for i in range(15):
        tags = {f"wq{i}"} if i < 14 else {"K0", "K1"}
        P.wait_tags(tags, lg=0)
        I("s_barrier")
        if i == 0:
            stamp(P, cfg, 1)
            emit(P, wq_reads(0))
            emit(P, extra)
            continue
        gaps = [[] for _ in range(16)]
        if i < 14: spread(wq_reads(i), 16, 0, 11, gaps)
        else: spread(k_reads(8), 16, 0, 11, gaps)
        if i in refill: place_groups(group_dma(refill[i]), gaps, 10, 16)
        if 1 <= i <= 3:
            for q in range(4): gaps[11 + q].append(xload(16 + 4*(i-1) + q))
        interleave(P, wq_mfmas(i-1), gaps)
    I("s_nop 3")
    for t in range(8):
        for k in range(8):
            I(f"v_cvt_pk_bf16_f32 v{S1+(k&7)+8*(t&1)}, v{OO+16*t+2*k}, v{OO+16*t+2*k+1}")
        for k in range(8):
            I(f"v_accvgpr_write_b32 a{aQ+8*t+k}, v{S1+(k&7)+8*(t&1)}")
    I("s_nop 0")
    stamp(P, cfg, 2)
    gaps = [[] for _ in range(16)]
    kr = k_reads(9)
    for s in range(16):
        gaps[s].append(kr[s])
        for z in range(4): gaps[s].append(f"v_mov_b64 v[{OO+8*s+2*z}:{OO+8*s+2*z+1}], 0")
    interleave(P, qk_mfmas(S0), gaps)
    I(f"v_mov_b32 v{vL0}, 0"); I(f"v_mov_b32 v{vL1}, 0")
    I("s_nop 5")
    emit(P, max_ops(S0))
    I(f"v_mov_b32 v{vT1}, v{vTM}")
    I("s_nop 1")
    I(f"v_permlane32_swap_b32 v{vTM}, v{vT1}")
    I(f"v_max_f32 v{vTM}, v{vTM}, v{vT1}")
    I(f"v_mul_f32 v{vMC}, s{sC}, v{vTM}")
    I(f"v_add_f32 v{vTHR}, s{sTC}, v{vTM}")

def iteration(P, cfg, t, tm, Sc, Sn, need, dmas, do_qk=True, do_kread=True, uid=""):
    I = P.I
    P.wait_tags(need, lg=0)
    I("s_barrier")
    fma = [f"v_fma_f32 v{Sc+i}, v{Sc+i}, s{sC}, -v{vMC}" for i in range(16)]
    ex = [f"v_exp_f32 v{Sc+i}, v{Sc+i}" for i in range(16)]
    add = [f"v_add_f32 v{(vL0, vL1)[i&1]}, v{(vL0, vL1)[i&1]}, v{Sc+i}" for i in range(16)]
    cvt = [f"v_cvt_pk_bf16_f32 v{PP+i}, v{Sc+2*i}, v{Sc+2*i+1}" for i in range(8)]
    vrd = v_reads(tm)
    g1 = [[] for _ in range(16)]; g2 = [[] for _ in range(16)]
    groups = [g for d in dmas for g in group_dma(d)]
    if do_qk:
        for g in range(16):
            g1[g] += vrd[2*g:2*g+2]
        for i in range(14):
            g1[i].append(fma[i]); g1[i+1].append(ex[i])
        g1[14].append(fma[14]); g1[15].append(fma[15])
        for k in range(4): g1[10+k].append(cvt[k])
        g2[0].append(ex[14]); g2[1].append(ex[15])
        for k in range(4): g2[2+k].append(cvt[4+k])
        interleave(P, qk_mfmas(Sn), g1)
    else:
        for i in range(16):
            emit(P, vrd[2*i:2*i+2])
            I(fma[i])
            if i: I(ex[i-1])
        I(ex[15])
        for k in range(8): I(cvt[k])
        I("s_nop 0")
    if do_kread: spread(k_reads((tm+2) & 3), 16, 0, 10, g2)
    spread(add, 16, 0, 16, g2)
    if do_qk:
        spread(max_ops(Sn), 16, 5, 13, g2)
        g2[13].append(f"v_cmp_gt_f32 vcc, v{vTM}, v{vTHR}")
    place_groups(groups, g2, 8 if len(groups) <= 8 else 0, 16)
    interleave(P, pv_mfmas(), g2)
    if do_qk:
        I(f"s_cbranch_vccz L_skip{uid}")
        I(f"s_call_b64 {sr(sRET,2)}, L_rescale")
        P.label(f"L_skip{uid}")

def rescale_sub(P):
    I = P.I
    P.label("L_rescale")
    I(f"v_mov_b32 v{vT1}, v{vTM}")
    I("s_nop 1")
    I(f"v_permlane32_swap_b32 v{vTM}, v{vT1}")
    I(f"v_max_f32 v{vTM}, v{vTM}, v{vT1}")
    I(f"v_mul_f32 v{vT1}, s{sC}, v{vTM}")
    I(f"v_max_f32 v{vT1}, v{vT1}, v{vMC}")
    I(f"v_sub_f32 v{vT2}, v{vMC}, v{vT1}")
    I(f"v_exp_f32 v{vT2}, v{vT2}")
    I(f"v_mov_b32 v{vMC}, v{vT1}")
    I(f"v_mov_b32 v{vT3}, s{sTC}")
    I(f"v_fma_f32 v{vTHR}, v{vT1}, s{sRC}, v{vT3}")
    I(f"v_mul_f32 v{vL0}, v{vL0}, v{vT2}")
    I(f"v_mul_f32 v{vL1}, v{vL1}, v{vT2}")
    I("s_nop 7")
    for r in range(128):
        I(f"v_mul_f32 v{OO+r}, v{OO+r}, v{vT2}")
    I("s_nop 1")
    I(f"s_setpc_b64 {sr(sRET,2)}")

WOSLOT = {0: 8, 1: 9, 2: 1, 3: 0, 4: 2, 5: 4, 6: 3, 7: 5, 8: 6, 9: 7, 10: 8, 11: 9, 12: 1, 13: 0}
def wo_reads(hc):
    slot = WOSLOT[hc]; F = aV if hc % 2 == 0 else aF1
    base = vOR + 2*(slot >> 2); so = (slot & 3) * SLOT
    L = []
    for s in range(8):
        for u in range(2):
            for k in range(2):
                L.append(f"ds_read_b64_tr_b16 {ar(F+4*(2*s+u)+2*k,2)}, v{base+u} offset:{so+s*2048+k*1024}")
    return L
def wo_mfmas(hc):
    F = aV if hc % 2 == 0 else aF1
    acc = (S0, 192)[(hc >> 1) & 1]
    L = []
    for s in range(8):
        for u in range(2):
            c = "0" if (hc % 2 == 0 and s == 0) else vr(acc+16*u, 16)
            L.append(f"{MF} {vr(acc+16*u,16)}, {ar(F+4*(2*s+u),4)}, {vr(OO+4*(8*(hc&1)+s),4)}, {c}")
    return L
def norm_ops(t):
    L = [f"v_mul_f32 v{OO+16*t+k}, v{OO+16*t+k}, v{vT1}" for k in range(16)]
    L += [f"v_cvt_pk_bf16_f32 v{OO+8*t+k}, v{OO+16*t+2*k}, v{OO+16*t+2*k+1}" for k in range(8)]
    return L
def out_ops(c, cfg):
    acc = (S0, 192)[c & 1]; T = 224 + 16*(c & 1)
    L = []
    for q in range(4):
        for k in range(4): L.append(f"v_cvt_pk_bf16_f32 v{T+4*q+k}, v{acc+8*q+2*k}, v{acc+8*q+2*k+1}")
        if q == 0: L.append(f"s_mov_b32 s69, {c*4096}")
        L.append((f"buffer_store_dwordx4 {vr(T+4*q,4)}, v{vPS}, {sr(sP,4)}, s69 offen offset:{q*1024}{cfg.pst}", f"st{c}"))
    return L

def epilogue(P, cfg):
    I = P.I
    stamp(P, cfg, 3)
    I(f"v_add_f32 v{vL0}, v{vL0}, v{vL1}")
    I(f"v_mov_b32 v{vT1}, v{vL0}")
    I("s_nop 1")
    I(f"v_permlane32_swap_b32 v{vL0}, v{vT1}")
    I(f"v_add_f32 v{vL0}, v{vL0}, v{vT1}")
    I(f"v_rcp_f32 v{vT1}, v{vL0}")
    for i in range(15):
        P.wait_tags({f"wo{i}"} if i < 14 else set(), lg=0)
        if i < 14: I("s_barrier")
        if i == 0:
            rd = wo_reads(0)
            emit(P, dma_wo(9, WOSLOT[9], cfg))
            emit(P, rd[:8])
            for t in range(4):
                emit(P, norm_ops(t))
                emit(P, rd[8+6*t:14+6*t])
            continue
        gaps = [[] for _ in range(16)]
        if i < 14: spread(wo_reads(i), 16, 0, 11, gaps)
        if i == 1: spread(sum((norm_ops(t) for t in range(4, 8)), []), 16, 0, 16, gaps)
        if 1 <= i <= 4: place_groups(group_dma(dma_wo(i+9, WOSLOT[i+9], cfg)), gaps, 11, 16)
        if i >= 3 and i % 2 == 1:
            spread(out_ops((i-3)//2, cfg), 16, 3, 16, gaps)
        interleave(P, wo_mfmas(i-1), gaps)
    I("s_nop 11")
    emit(P, out_ops(6, cfg))
    stamp(P, cfg, 4)

def stamp_out(P, cfg, nst, base_s):
    if not cfg.stamp: return
    I = P.I
    P.wait(vm=0)
    I(f"s_memrealtime {sr(sST+2*5,2)}")
    P.items.append(Ins("s_waitcnt lgkmcnt(0)"))
    I("s_lshl_b32 s3, s2, 6")
    I(f"s_add_u32 s3, s3, {(480<<20)+base_s}")
    I("s_add_u32 s32, s32, s3"); I("s_addc_u32 s33, s33, 0")
    for i in range(12): I(f"v_mov_b32 v{4+i}, s{sST+i}")
    I("v_mov_b32 v3, 0")
    I("v_cmp_eq_u32 vcc, 0, v0")
    I("s_and_saveexec_b64 s[90:91], vcc")
    I("s_cbranch_execz L_end")
    I("global_store_dwordx4 v3, v[4:7], s[32:33]")
    I("global_store_dwordx4 v3, v[8:11], s[32:33] offset:16")
    I("global_store_dwordx4 v3, v[12:15], s[32:33] offset:32")

def main_kernel(cfg):
    global XNT
    XNT = getattr(cfg, "xnt", "")
    P = Prog()
    prologue(P, cfg)
    pro_end = len(P.items)
    entry_vm = [t for _, t in P.vm][-16:]
    assert entry_vm == ["K3"]*4 + ["V1"]*4 + ["K4"]*4 + ["V2"]*4, entry_vm
    P.I(f"s_mov_b32 s{sCNT}, 15")
    P.wait(lg=0)
    P.raw(".p2align 3")
    P.label("L_loop")
    l0 = len(P.items)
    P.lg = [(set(), 'unknown')]
    vm_in = list(P.vm)
    P.vm = [(set(), f"old")]*8 + P.vm[-16:]
    P.vm = [(set(), "K2")]*4 + [(set(), "V0")]*4 + P.vm[-16:]
    for t in range(4):
        Sc, Sn = (S0, S1) if t % 2 == 0 else (S1, S0)
        iteration(P, cfg, t, t, Sc, Sn, {f"V{t}", f"K{t+2}"},
                  [dma_k(f"K{t+5}", (t+1) & 3, cfg), dma_v(f"V{t+3}", 4 + ((t+3) & 3), cfg)], uid=f"_l{t}")
    assert [t for _, t in P.vm][-16:] == ["K7"]*4 + ["V5"]*4 + ["K8"]*4 + ["V6"]*4
    P.I(f"s_sub_u32 s{sCNT}, s{sCNT}, 1")
    P.I(f"s_cmp_lg_u32 s{sCNT}, 0")
    P.I("s_cbranch_scc1 L_loop")
    l1 = len(P.items)
    P.vm = [(set(), x) for x in ["K62"]*4 + ["V60"]*4 + ["K63"]*4 + ["V61"]*4 + ["K64"]*4 + ["V62"]*4]
    W = lambda hc: dma_wo(hc, WOSLOT[hc], cfg)
    iteration(P, cfg, 60, 0, S0, S1, {"V60", "K62"}, [dma_v("V63", 7, cfg), W(0), W(1), W(2)], uid="_60")
    iteration(P, cfg, 61, 1, S1, S0, {"V61", "K63", "K64"}, [W(3), W(4), W(5)], uid="_61")
    iteration(P, cfg, 62, 2, S0, S1, {"V62"}, [W(6), W(7)], do_kread=False, uid="_62")
    iteration(P, cfg, 63, 3, S1, S0, {"V63"}, [W(8)], do_qk=False, do_kread=False, uid="_63")
    epilogue(P, cfg)
    stamp_out(P, cfg, 6, 0)
    P.label("L_end")
    P.I("s_endpgm")
    e0 = len(P.items)
    rescale_sub(P)
    ins = lambda a, b: [x for x in P.items[a:b] if isinstance(x, Ins)]
    errs = check_hazards(ins(0, e0), "linear")
    errs += check_hazards(ins(l1 - 60, l1) + ins(l0, l0 + 60), "backedge")
    sub = ins(e0, len(P.items))
    errs += check_hazards([Ins(x) for x in pv_mfmas()[-3:]] + [Ins("s_cbranch_vccz L"), Ins("s_call_b64 s[70:71], L")] + sub + [Ins("s_barrier")] + [Ins(x) for x in qk_mfmas(S0)[:2]], "rescale")
    for e in errs: print("HAZARD", e, file=sys.stderr)
    assert not errs
    return P

def reduce_kernel(cfg):
    P = Prog(); I = P.I
    I("s_cmp_ge_u32 s2, 448")
    I("s_cbranch_scc1 L_end2")
    if cfg.stamp: I(f"s_memrealtime {sr(sST,2)}")
    I("s_load_dwordx2 s[4:5], s[0:1], 80")
    I("s_load_dwordx2 s[32:33], s[0:1], 96")
    I(f"s_mul_hi_u32 s8, s2, {(2**32 + 27)//28}")
    I("s_mul_i32 s9, s8, 28"); I("s_sub_u32 s9, s2, s9")
    I(f"s_mul_hi_u32 s10, s9, {(2**32 + 6)//7}")
    I("s_mul_i32 s11, s10, 7"); I("s_sub_u32 s11, s9, s11")
    I("v_lshlrev_b32 v1, 4, v0")
    I("s_lshl_b32 s12, s9, 12")
    I("v_add_u32 v1, s12, v1")
    I("v_and_b32 v2, 31, v0")
    I("s_lshl_b32 s13, s10, 5")
    I("v_add_u32 v2, s13, v2")
    I("v_cmp_gt_u32 vcc, 112, v2")
    I("v_mov_b32 v3, 0x40000000")
    I("v_bfe_u32 v4, v0, 5, 1")
    I("v_cndmask_b32 v1, v3, v1, vcc")
    I("v_lshrrev_b32 v5, 6, v0")
    I("v_mul_u32_u24 v2, 1792, v2")
    I("v_lshl_add_u32 v2, v4, 6, v2")
    I("v_lshl_add_u32 v2, v5, 4, v2")
    I("v_cndmask_b32 v2, v3, v2, vcc")
    P.items.append(Ins("s_waitcnt lgkmcnt(0)"))
    I("s_mul_i32 s14, s8, %d" % (16*114688))
    I("s_add_u32 s16, s32, s14"); I("s_addc_u32 s17, s33, 0"); I(f"s_mov_b32 s18, {16*114688}"); I("s_mov_b32 s19, 0x20000")
    for h in range(16):
        I(f"s_mov_b32 s{40+h}, {h*114688}")
    for h in range(16):
        I(f"buffer_load_dwordx4 {vr(16+4*h,4)}, v1, s[16:19], s{40+h} offen{cfg.pld}")
    I("s_and_b32 s14, s8, 7"); I("s_mul_i32 s14, s14, 200704")
    I("s_lshr_b32 s15, s8, 3"); I("s_mul_i32 s15, s15, 896"); I("s_add_u32 s14, s14, s15")
    I("s_lshl_b32 s15, s11, 7"); I("s_add_u32 s14, s14, s15")
    I("s_add_u32 s20, s4, s14"); I("s_addc_u32 s21, s5, 0")
    I(f"s_mov_b32 s22, {111*1792+128}"); I("s_mov_b32 s23, 0x20000")
    for h in range(16):
        for k in range(4):
            r = 16 + 4*h + k
            if h == 0:
                I(f"v_lshlrev_b32 v{8+2*k}, 16, v{r}")
                I(f"v_and_b32 v{9+2*k}, 0xffff0000, v{r}")
            else:
                I(f"v_lshlrev_b32 v6, 16, v{r}")
                I(f"v_and_b32 v7, 0xffff0000, v{r}")
                I(f"v_add_f32 v{8+2*k}, v{8+2*k}, v6")
                I(f"v_add_f32 v{9+2*k}, v{9+2*k}, v7")
    for k in range(4): I(f"v_cvt_pk_bf16_f32 v{16+k}, v{8+2*k}, v{9+2*k}")
    I("buffer_store_dwordx4 v[16:19], v2, s[20:23], 0 offen")
    if cfg.stamp:
        P.wait(vm=0)
        I(f"s_memrealtime {sr(sST+2,2)}")
        P.items.append(Ins("s_waitcnt lgkmcnt(0)"))
        I("s_lshl_b32 s3, s2, 6")
        I(f"s_add_u32 s3, s3, {(480<<20)+256*64}")
        I("s_add_u32 s32, s32, s3"); I("s_addc_u32 s33, s33, 0")
        for i in range(4): I(f"v_mov_b32 v{4+i}, s{sST+i}")
        I("v_mov_b32 v3, 0")
        I("v_cmp_eq_u32 vcc, 0, v0")
        I("s_and_saveexec_b64 s[90:91], vcc")
        I("s_cbranch_execz L_end2")
        I("global_store_dwordx4 v3, v[4:7], s[32:33]")
    P.label("L_end2")
    I("s_endpgm")
    errs = check_hazards([x for x in P.items if isinstance(x, Ins)], "reduce")
    for e in errs: print("HAZARD", e, file=sys.stderr)
    assert not errs
    return P

HEADER = open("concat_heads__gqa_block_cached__mha_block_cached__near_ridge.s.ref").read().split("; Override launch")[0]

def kd(name, vgpr, acc, sgpr=102):
    return f""".p2align 6
.amdhsa_kernel {name}
  .amdhsa_next_free_vgpr {vgpr}
  .amdhsa_next_free_sgpr {sgpr}
  .amdhsa_accum_offset {acc}
  .amdhsa_group_segment_fixed_size 0
  .amdhsa_kernarg_size 104
  .amdhsa_user_sgpr_count 2
  .amdhsa_user_sgpr_kernarg_segment_ptr 1
  .amdhsa_system_sgpr_workgroup_id_x 1
  .amdhsa_float_denorm_mode_32 3
.end_amdhsa_kernel
"""

def build(cfg):
    out = HEADER
    out += f"; @launch kernel={KN} grid=(256,1,1) block=(256,1,1) lds=163840\n"
    out += f"; @launch kernel={K2} grid=(448,1,1) block=(256,1,1) lds=0\n"
    out += '.amdgcn_target "amdgcn-amd-amdhsa--gfx950"\n.text\n'
    out += f".globl {KN}\n.p2align 8\n.type {KN},@function\n{KN}:\n"
    out += main_kernel(cfg).text()
    out += f".globl {K2}\n.p2align 8\n.type {K2},@function\n{K2}:\n"
    out += reduce_kernel(cfg).text()
    out += '.section .rodata,"a"\n'
    out += kd(KN, 512, 256) + kd(K2, 80, 80)
    return out

if __name__ == "__main__":
    kw = {}
    outp = sys.argv[1]
    for a in sys.argv[2:]:
        k, v = a.split("=", 1)
        try: v = eval(v)
        except Exception: pass
        kw[k] = v
    open(outp, "w").write(build(Cfg(**kw)))
```

```python
import sys, struct, math
from asmlib import *

KN = "concat_heads__gqa_block_cached__mha_block_cached__near_ridge_kernel"
K2 = "reduce_kernel"

def f32bits(x): return struct.unpack('<I', struct.pack('<f', x))[0]

class Cfg:
    stamp = False
    nt = " nt"
    wnt = ""
    pst = ""
    pld = ""
    T = 8.0
    polA = (" nt", " nt")
    polB = (" nt", " nt")
    noadv = False
    def __init__(self, **kw):
        for k, v in kw.items(): setattr(self, k, v)

S0, S1, PP = 16, 32, 48
vMC, vTHR, vL0, vTM, vL1, vT1, vT2, vT3 = 56, 57, 58, 59, 60, 61, 62, 63
vKR = 64
vVR = 72
vKD = 76
vVD = 80
vQD = 82
vQR = 84
vX = 92
vOD = 93
vOR = 94
vPS = 100
vKR8 = 104
OO = 128
aV, aK, aQ, aF1, aX = 0, 64, 128, 192, 64
sX, sK, sV, sWQ, sWO, sP = 36, 40, 44, 48, 52, 56
sKOFF, sVOFF, sWB, sCNT, sC, sRC, sTC, sTMP, sTMP2 = 60, 61, 62, 63, 64, 65, 66, 67, 68
sRET = 70
sST = 72
SLOT = 16384

def vr(b, n): return f"v[{b}:{b+n-1}]"
def ar(b, n): return f"a[{b}:{b+n-1}]"
def sr(b, n): return f"s[{b}:{b+n-1}]"
MF = "v_mfma_f32_32x32x16_bf16"

def stamp(P, cfg, i):
    if cfg.stamp:
        P.I(f"s_memrealtime {sr(sST+2*i,2)}")

def setup(P, cfg):
    I = P.I
    stamp(P, cfg, 0)
    I("s_load_dwordx16 s[8:23], s[0:1], 0")
    I("s_load_dwordx8 s[24:31], s[0:1], 64")
    I("s_load_dwordx2 s[32:33], s[0:1], 96")
    I("s_and_b32 s3, s2, 7")
    I("s_lshr_b32 s7, s2, 3")
    I("s_and_b32 s4, s7, 1")
    I("s_lshl_b32 s3, s3, 1")
    I("s_or_b32 s4, s4, s3")
    I("s_bfe_u32 s5, s7, 0x10001")
    I("s_lshr_b32 s6, s7, 2")
    I("v_and_b32 v1, 63, v0")
    I("v_lshrrev_b32 v2, 6, v0")
    I("v_lshrrev_b32 v3, 5, v1")
    I("v_readfirstlane_b32 s34, v2")
    I("v_and_b32 v4, 31, v1")
    I("v_lshlrev_b32 v5, 3, v2")
    I("v_add_u32 v5, v5, v3")
    I("s_lshl_b32 s62, s34, 12")
    I("v_lshl_add_u32 v6, v2, 5, v4")
    I("v_mul_u32_u24 v6, 896, v6")
    I(f"v_lshl_add_u32 v{vX}, v3, 4, v6")
    for jp in range(2):
        I(f"v_lshl_add_u32 v7, v3, 2, {8*jp}")
        I("v_xor_b32 v7, v7, v4")
        I("v_lshlrev_b32 v7, 4, v7")
        I(f"v_lshl_add_u32 v{vQD+jp}, v5, 13, v7")
        I(f"v_lshl_add_u32 v{vVD+jp}, v5, 9, v7")
    P.items.append(Ins("s_waitcnt lgkmcnt(0)"))
    I("s_cmp_eq_u32 s5, 0")
    I("s_cselect_b64 s[8:9], s[8:9], s[18:19]")
    I("s_cselect_b64 s[10:11], s[10:11], s[20:21]")
    I("s_cselect_b64 s[12:13], s[12:13], s[22:23]")
    I("s_cselect_b64 s[14:15], s[14:15], s[24:25]")
    I("s_cselect_b64 s[16:17], s[16:17], s[26:27]")
    I("s_lshl_b32 s3, s4, 9")
    I(f"s_add_u32 s{sWQ}, s14, s3"); I(f"s_addc_u32 s{sWQ+1}, s15, 0")
    I(f"s_mov_b32 s{sWQ+2}, {447*8192+512}"); I(f"s_mov_b32 s{sWQ+3}, 0x20000")
    I("s_mul_i32 s3, s6, 100352")
    I(f"s_add_u32 s{sX}, s8, s3"); I(f"s_addc_u32 s{sX+1}, s9, 0")
    I(f"s_mov_b32 s{sX+2}, 100352"); I(f"s_mov_b32 s{sX+3}, 0x20000")

def setup2(P, cfg):
    I = P.I
    I("s_lshl_b32 s3, s6, 4"); I("s_add_u32 s3, s3, s4")
    I("s_lshr_b32 s7, s3, 1")
    I("s_cmp_eq_u32 s5, 0")
    I("s_cselect_b32 s3, s7, s3")
    I("s_lshl_b32 s3, s3, 20")
    I(f"s_add_u32 s{sK}, s10, s3"); I(f"s_addc_u32 s{sK+1}, s11, 0")
    I(f"s_mov_b32 s{sK+2}, 0x100000"); I(f"s_mov_b32 s{sK+3}, 0x20000")
    I(f"s_add_u32 s{sV}, s12, s3"); I(f"s_addc_u32 s{sV+1}, s13, 0")
    I(f"s_mov_b32 s{sV+2}, 0x100000"); I(f"s_mov_b32 s{sV+3}, 0x20000")
    for j in range(4):
        I(f"v_add_u32 v7, {2*j}, v5")
        I("v_and_b32 v7, 15, v7")
        I("v_xor_b32 v7, v7, v4")
        I("v_lshlrev_b32 v7, 4, v7")
        I(f"v_lshl_add_u32 v{vKD+j}, v5, 9, v7")

def setup3(P, cfg):
    I = P.I
    I("s_mul_i32 s3, s4, 229376")
    I(f"s_add_u32 s{sWO}, s16, s3"); I(f"s_addc_u32 s{sWO+1}, s17, 0")
    I(f"s_mov_b32 s{sWO+2}, 229376"); I(f"s_mov_b32 s{sWO+3}, 0x20000")
    I("s_lshl_b32 s3, s5, 3"); I("s_add_u32 s3, s3, s6"); I("s_lshl_b32 s3, s3, 4"); I("s_add_u32 s3, s3, s4")
    I("s_mul_i32 s3, s3, 114688")
    I(f"s_add_u32 s{sP}, s32, s3"); I(f"s_addc_u32 s{sP+1}, s33, 0")
    I(f"s_mov_b32 s{sP+2}, 114688"); I(f"s_mov_b32 s{sP+3}, 0x20000")
    c = math.log2(math.e) / 16.0
    I(f"s_mov_b32 s{sC}, {f32bits(c):#x}")
    I(f"s_mov_b32 s{sRC}, {f32bits(1.0/c):#x}")
    I(f"s_mov_b32 s{sTC}, {f32bits(cfg.T/c):#x}")
    I("v_bfe_u32 v8, v1, 2, 2")
    I("v_and_b32 v9, 3, v1")
    I("v_bfe_u32 v10, v1, 4, 1")
    I("v_lshl_add_u32 v11, v10, 2, v9")
    I("v_lshlrev_b32 v11, 3, v11")
    I("v_and_b32 v12, 1, v9"); I("v_lshlrev_b32 v12, 1, v12"); I("v_lshrrev_b32 v13, 1, v9"); I("v_or_b32 v12, v12, v13")
    I("v_lshl_add_u32 v12, v10, 2, v12"); I("v_lshlrev_b32 v12, 3, v12")
    I("v_lshl_add_u32 v13, v3, 2, v8")
    I("v_lshlrev_b32 v13, 9, v13")
    I("v_add_u32 v13, v13, v11")
    I("v_add_u32 v13, 0x10000, v13")
    I("v_lshl_add_u32 v14, v3, 3, v8")
    I("v_lshlrev_b32 v14, 9, v14")
    I("v_add_u32 v14, v14, v12")
    for tt in range(4):
        I(f"v_xor_b32 v7, {tt}, v8")
        I(f"v_lshl_add_u32 v{vVR+tt}, v7, 6, v13")
        I(f"v_lshl_add_u32 v{vQR+tt}, v7, 6, v14")
        I(f"v_add_u32 v{vQR+4+tt}, 0x10000, v{vQR+tt}")

def setup4():
    L = []
    A = L.append
    A("v_and_b32 v15, 15, v4")
    A("v_xor_b32 v15, v15, v3")
    for s in range(8):
        A(f"v_xor_b32 v7, {2*s}, v15")
        A("v_lshlrev_b32 v7, 4, v7")
        A(f"v_lshl_add_u32 v{vKR+s}, v4, 9, v7")
        A(f"v_add_u32 v{vKR8+s}, 0x20000, v{vKR+s}")
    A("v_lshrrev_b32 v7, 3, v1")
    A("v_lshl_add_u32 v7, v2, 5, v7")
    A("v_mul_u32_u24 v7, 896, v7")
    A("v_and_b32 v6, 7, v1")
    A("v_lshlrev_b32 v15, 1, v10")
    A("v_xor_b32 v6, v6, v15")
    A(f"v_lshl_add_u32 v{vOD}, v6, 4, v7")
    A("v_lshl_add_u32 v7, v3, 2, v8")
    A("v_lshlrev_b32 v7, 7, v7")
    A("v_and_b32 v6, 1, v9")
    A("v_lshlrev_b32 v6, 6, v6")
    A("v_lshrrev_b32 v15, 1, v9")
    A("v_lshl_add_u32 v15, v10, 1, v15")
    A("v_lshl_add_u32 v6, v15, 3, v6")
    A("v_add_u32 v7, v7, v6")
    A("v_lshrrev_b32 v6, 1, v8")
    for u in range(2):
        A(f"v_xor_b32 v15, {u}, v6")
        A(f"v_lshl_add_u32 v{vOR+u}, v15, 5, v7")
        A(f"v_add_u32 v{vOR+2+u}, 0x10000, v{vOR+u}")
        A(f"v_add_u32 v{vOR+4+u}, 0x20000, v{vOR+u}")
    A("v_mul_u32_u24 v7, 28672, v2")
    A("v_lshl_add_u32 v7, v1, 4, v7")
    A("v_lshl_add_u32 v6, v2, 5, v4")
    A("v_cmp_gt_u32 vcc, 112, v6")
    A("v_mov_b32 v6, 0x40000000")
    A("s_nop 0")
    A(f"v_cndmask_b32 v{vPS}, v6, v7, vcc")
    return L

def dma_wq(i, slot, cfg):
    L = [f"s_add_u32 m0, s{sWB}, {slot*SLOT}"]
    for j in range(4):
        so = (32*i + 2*j) * 8192 - j*1024
        L.append(f"s_mov_b32 s{sTMP+(j&1)}, {so}")
        L.append((f"buffer_load_dwordx4 v{vQD+(j&1)}, {sr(sWQ,4)}, s{sTMP+(j&1)} offen offset:{j*1024}{cfg.wnt} lds", f"wq{i}"))
    return L
def dma_wo(hc, slot, cfg):
    L = [f"s_add_u32 m0, s{sWB}, {slot*SLOT}"]
    for j in range(4):
        so = (hc >> 1) * 128 + (128*(hc & 1) + 8*j) * 896 - j*1024
        L.append(f"s_mov_b32 s{sTMP+(j&1)}, {so}")
        L.append((f"buffer_load_dwordx4 v{vOD}, {sr(sWO,4)}, s{sTMP+(j&1)} offen offset:{j*1024}{cfg.wnt} lds", f"wo{hc}"))
    return L
def dma_k(tag, slot, cfg, const=None):
    L = [f"s_add_u32 m0, s{sWB}, {slot*SLOT}"]
    if const is not None: L.append(f"s_mov_b32 s{sKOFF}, {const*SLOT}")
    else: L.append(f"s_add_u32 s{sKOFF}, s{sKOFF}, {0 if cfg.noadv else SLOT}")
    for j in range(4):
        L.append((f"buffer_load_dwordx4 v{vKD+j}, {sr(sK,4)}, s{sKOFF} offen offset:{j*1024}{cfg.pol[0]} lds", tag))
    return L
def dma_v(tag, slot, cfg, const=None):
    L = [f"s_add_u32 m0, s{sWB}, {slot*SLOT}"]
    if const is not None: L.append(f"s_mov_b32 s{sVOFF}, {const*SLOT}")
    else: L.append(f"s_add_u32 s{sVOFF}, s{sVOFF}, {0 if cfg.noadv else SLOT}")
    for j in range(4):
        L.append((f"buffer_load_dwordx4 v{vVD+(j&1)}, {sr(sV,4)}, s{sVOFF} offen offset:{j*1024}{cfg.pol[1]} lds", tag))
    return L
def emit(P, L):
    for f in L:
        if callable(f): f()
        elif isinstance(f, tuple): P.I(f[0], f[1])
        else: P.I(f)
def group_dma(L):
    out, cur = [], []
    for f in L:
        cur.append(f)
        if isinstance(f, tuple): out.append(cur); cur = []
    assert not cur
    return out
def place_groups(groups, gaps, start, end):
    n = end - start; k = len(groups)
    for i, g in enumerate(groups):
        gaps[start + (i*n)//k] += g

XNT = ""
def xload(m): return (f"buffer_load_dwordx4 {ar(aX+4*m,4)}, v{vX}, {sr(sX,4)}, 0 offen offset:{32*m}{XNT}", f"x{m}")

PI = {6: 2, 7: 4, 0: 3, 1: 5, 2: 0, 3: 6, 4: 1, 5: 7}

def wq_reads(i):
    slot = PI[i % 8]; F = aV if i % 2 == 0 else aF1
    base = vQR + (4 if slot >= 4 else 0); so = (slot & 3) * SLOT
    L = []
    for m in range(2):
        for t in range(8):
            for u in range(2):
                L.append(f"ds_read_b64_tr_b16 {ar(F+4*(8*m+t)+2*u,2)}, v{base+(t&3)} offset:{so+(16*m+4*u)*512+(t>>2)*256}")
    return L
def wq_mfmas(i):
    F = aV if i % 2 == 0 else aF1
    L = []
    for m in range(2):
        for t in range(8):
            c = "0" if (i == 0 and m == 0) else vr(OO+16*t, 16)
            L.append(f"{MF} {vr(OO+16*t,16)}, {ar(F+4*(8*m+t),4)}, {ar(aX+4*(2*i+m),4)}, {c}")
    return L
def k_reads(slot):
    base, so = (vKR8, (slot-8)*SLOT) if slot >= 8 else (vKR, slot*SLOT)
    return [f"ds_read_b128 {ar(aK+4*s,4)}, v{base+(s&7)} offset:{so+(s>>3)*256}" for s in range(16)]
def qk_mfmas(S):
    return [f"{MF} {vr(S,16)}, {ar(aK+4*s,4)}, {ar(aQ+4*s,4)}, {'0' if s == 0 else vr(S,16)}" for s in range(16)]
def v_reads(vslot):
    L = []
    for m in range(2):
        for t in range(8):
            for u in range(2):
                L.append(f"ds_read_b64_tr_b16 {ar(aV+4*(8*m+t)+2*u,2)}, v{vVR+(t&3)} offset:{vslot*SLOT+(16*m+8*u)*512+(t>>2)*256}")
    return L
def pv_mfmas():
    return [f"{MF} {vr(OO+16*t,16)}, {ar(aV+4*(8*m+t),4)}, {vr(PP+4*m,4)}, {vr(OO+16*t,16)}" for m in range(2) for t in range(8)]
def max_ops(S):
    L = [f"v_max3_f32 v{vTM}, v{S}, v{S+1}, v{S+2}"]
    for i in range(6): L.append(f"v_max3_f32 v{vTM}, v{vTM}, v{S+3+2*i}, v{S+4+2*i}")
    L.append(f"v_max_f32 v{vTM}, v{vTM}, v{S+15}")
    return L

def prologue(P, cfg):
    I = P.I
    setup(P, cfg)
    for i in range(8):
        emit(P, dma_wq(i, PI[i], cfg))
        emit(P, [xload(2*i), xload(2*i+1)])
        if i == 1: setup2(P, cfg)
    emit(P, dma_k("K0", 8, cfg, const=0))
    emit(P, dma_k("K1", 9, cfg, const=1))
    setup3(P, cfg)
    extra = setup4()
    refill = {7: dma_k("K2", 2, cfg, const=2), 8: dma_v("V0", 4, cfg, const=0), 9: dma_k("K3", 3, cfg, const=3),
              10: dma_v("V1", 5, cfg, const=1), 11: dma_k("K4", 0, cfg, const=4), 12: dma_v("V2", 6, cfg, const=2)}
    for i in range(1, 7): refill[i] = dma_wq(i+7, PI[(i+7) % 8], cfg)
    for i in range(15):
        tags = {f"wq{i}"} if i < 14 else {"K0", "K1"}
        P.wait_tags(tags, lg=0)
        I("s_barrier")
        if i == 0:
            stamp(P, cfg, 1)
            emit(P, wq_reads(0))
            emit(P, extra)
            continue
        gaps = [[] for _ in range(16)]
        if i < 14: spread(wq_reads(i), 16, 0, 11, gaps)
        else: spread(k_reads(8), 16, 0, 11, gaps)
        if i in refill: place_groups(group_dma(refill[i]), gaps, 10, 16)
        if 1 <= i <= 3:
            for q in range(4): gaps[11 + q].append(xload(16 + 4*(i-1) + q))
        interleave(P, wq_mfmas(i-1), gaps)
    I("s_nop 3")
    for t in range(8):
        for k in range(8):
            I(f"v_cvt_pk_bf16_f32 v{S1+(k&7)+8*(t&1)}, v{OO+16*t+2*k}, v{OO+16*t+2*k+1}")
        for k in range(8):
            I(f"v_accvgpr_write_b32 a{aQ+8*t+k}, v{S1+(k&7)+8*(t&1)}")
    I("s_nop 0")
    stamp(P, cfg, 2)
    gaps = [[] for _ in range(16)]
    kr = k_reads(9)
    for s in range(16):
        gaps[s].append(kr[s])
        for z in range(4): gaps[s].append(f"v_mov_b64 v[{OO+8*s+2*z}:{OO+8*s+2*z+1}], 0")
    interleave(P, qk_mfmas(S0), gaps)
    I(f"v_mov_b32 v{vL0}, 0"); I(f"v_mov_b32 v{vL1}, 0")
    I("s_nop 5")
    emit(P, max_ops(S0))
    I(f"v_mov_b32 v{vT1}, v{vTM}")
    I("s_nop 1")
    I(f"v_permlane32_swap_b32 v{vTM}, v{vT1}")
    I(f"v_max_f32 v{vTM}, v{vTM}, v{vT1}")
    I(f"v_mul_f32 v{vMC}, s{sC}, v{vTM}")
    I(f"v_add_f32 v{vTHR}, s{sTC}, v{vTM}")

def iteration(P, cfg, t, tm, Sc, Sn, need, dmas, do_qk=True, do_kread=True, uid=""):
    I = P.I
    P.wait_tags(need, lg=0)
    I("s_barrier")
    fma = [f"v_fma_f32 v{Sc+i}, v{Sc+i}, s{sC}, -v{vMC}" for i in range(16)]
    ex = [f"v_exp_f32 v{Sc+i}, v{Sc+i}" for i in range(16)]
    add = [f"v_add_f32 v{(vL0, vL1)[i&1]}, v{(vL0, vL1)[i&1]}, v{Sc+i}" for i in range(16)]
    cvt = [f"v_cvt_pk_bf16_f32 v{PP+i}, v{Sc+2*i}, v{Sc+2*i+1}" for i in range(8)]
    vrd = v_reads(tm)
    g1 = [[] for _ in range(16)]; g2 = [[] for _ in range(16)]
    groups = [g for d in dmas for g in group_dma(d)]
    if do_qk:
        for g in range(16):
            g1[g] += vrd[2*g:2*g+2]
        for i in range(14):
            g1[i].append(fma[i]); g1[i+1].append(ex[i])
        g1[14].append(fma[14]); g1[15].append(fma[15])
        for k in range(4): g1[10+k].append(cvt[k])
        g2[0].append(ex[14]); g2[1].append(ex[15])
        for k in range(4): g2[2+k].append(cvt[4+k])
        interleave(P, qk_mfmas(Sn), g1)
    else:
        for i in range(16):
            emit(P, vrd[2*i:2*i+2])
            I(fma[i])
            if i: I(ex[i-1])
        I(ex[15])
        for k in range(8): I(cvt[k])
        I("s_nop 0")
    if do_kread: spread(k_reads((tm+2) & 3), 16, 0, 10, g2)
    spread(add, 16, 0, 16, g2)
    if do_qk:
        spread(max_ops(Sn), 16, 5, 13, g2)
        g2[13].append(f"v_cmp_gt_f32 vcc, v{vTM}, v{vTHR}")
    place_groups(groups, g2, 8 if len(groups) <= 8 else 0, 16)
    interleave(P, pv_mfmas(), g2)
    if do_qk:
        I(f"s_cbranch_vccz L_skip{uid}")
        I(f"s_call_b64 {sr(sRET,2)}, L_rescale")
        P.label(f"L_skip{uid}")

def rescale_sub(P):
    I = P.I
    P.label("L_rescale")
    I(f"v_mov_b32 v{vT1}, v{vTM}")
    I("s_nop 1")
    I(f"v_permlane32_swap_b32 v{vTM}, v{vT1}")
    I(f"v_max_f32 v{vTM}, v{vTM}, v{vT1}")
    I(f"v_mul_f32 v{vT1}, s{sC}, v{vTM}")
    I(f"v_max_f32 v{vT1}, v{vT1}, v{vMC}")
    I(f"v_sub_f32 v{vT2}, v{vMC}, v{vT1}")
    I(f"v_exp_f32 v{vT2}, v{vT2}")
    I(f"v_mov_b32 v{vMC}, v{vT1}")
    I(f"v_mov_b32 v{vT3}, s{sTC}")
    I(f"v_fma_f32 v{vTHR}, v{vT1}, s{sRC}, v{vT3}")
    I(f"v_mul_f32 v{vL0}, v{vL0}, v{vT2}")
    I(f"v_mul_f32 v{vL1}, v{vL1}, v{vT2}")
    I("s_nop 7")
    for r in range(128):
        I(f"v_mul_f32 v{OO+r}, v{OO+r}, v{vT2}")
    I("s_nop 1")
    I(f"s_setpc_b64 {sr(sRET,2)}")

WOSLOT = {0: 8, 1: 9, 2: 1, 3: 0, 4: 2, 5: 4, 6: 3, 7: 5, 8: 6, 9: 7, 10: 8, 11: 9, 12: 1, 13: 0}
def wo_reads(hc):
    slot = WOSLOT[hc]; F = aV if hc % 2 == 0 else aF1
    base = vOR + 2*(slot >> 2); so = (slot & 3) * SLOT
    L = []
    for s in range(8):
        for u in range(2):
            for k in range(2):
                L.append(f"ds_read_b64_tr_b16 {ar(F+4*(2*s+u)+2*k,2)}, v{base+u} offset:{so+s*2048+k*1024}")
    return L
def wo_mfmas(hc):
    F = aV if hc % 2 == 0 else aF1
    acc = (S0, 192)[(hc >> 1) & 1]
    L = []
    for s in range(8):
        for u in range(2):
            c = "0" if (hc % 2 == 0 and s == 0) else vr(acc+16*u, 16)
            L.append(f"{MF} {vr(acc+16*u,16)}, {ar(F+4*(2*s+u),4)}, {vr(OO+4*(8*(hc&1)+s),4)}, {c}")
    return L
def norm_ops(t):
    L = [f"v_mul_f32 v{OO+16*t+k}, v{OO+16*t+k}, v{vT1}" for k in range(16)]
    L += [f"v_cvt_pk_bf16_f32 v{OO+8*t+k}, v{OO+16*t+2*k}, v{OO+16*t+2*k+1}" for k in range(8)]
    return L
def out_ops(c, cfg):
    acc = (S0, 192)[c & 1]; T = 224 + 16*(c & 1)
    L = []
    for q in range(4):
        for k in range(4): L.append(f"v_cvt_pk_bf16_f32 v{T+4*q+k}, v{acc+8*q+2*k}, v{acc+8*q+2*k+1}")
        if q == 0: L.append(f"s_mov_b32 s69, {c*4096}")
        L.append((f"buffer_store_dwordx4 {vr(T+4*q,4)}, v{vPS}, {sr(sP,4)}, s69 offen offset:{q*1024}{cfg.pst}", f"st{c}"))
    return L

def epilogue(P, cfg):
    I = P.I
    stamp(P, cfg, 3)
    I(f"v_add_f32 v{vL0}, v{vL0}, v{vL1}")
    I(f"v_mov_b32 v{vT1}, v{vL0}")
    I("s_nop 1")
    I(f"v_permlane32_swap_b32 v{vL0}, v{vT1}")
    I(f"v_add_f32 v{vL0}, v{vL0}, v{vT1}")
    I(f"v_rcp_f32 v{vT1}, v{vL0}")
    for i in range(15):
        P.wait_tags({f"wo{i}"} if i < 14 else set(), lg=0)
        if i < 14: I("s_barrier")
        if i == 0:
            rd = wo_reads(0)
            emit(P, dma_wo(9, WOSLOT[9], cfg))
            emit(P, rd[:8])
            for t in range(4):
                emit(P, norm_ops(t))
                emit(P, rd[8+6*t:14+6*t])
            continue
        gaps = [[] for _ in range(16)]
        if i < 14: spread(wo_reads(i), 16, 0, 11, gaps)
        if i == 1: spread(sum((norm_ops(t) for t in range(4, 8)), []), 16, 0, 16, gaps)
        if 1 <= i <= 4: place_groups(group_dma(dma_wo(i+9, WOSLOT[i+9], cfg)), gaps, 11, 16)
        if i >= 3 and i % 2 == 1:
            spread(out_ops((i-3)//2, cfg), 16, 3, 16, gaps)
        interleave(P, wo_mfmas(i-1), gaps)
    I("s_nop 11")
    emit(P, out_ops(6, cfg))
    stamp(P, cfg, 4)

def stamp_out(P, cfg, nst, base_s):
    if not cfg.stamp: return
    I = P.I
    P.wait(vm=0)
    I(f"s_memrealtime {sr(sST+2*5,2)}")
    P.items.append(Ins("s_waitcnt lgkmcnt(0)"))
    I("s_lshl_b32 s3, s2, 6")
    I(f"s_add_u32 s3, s3, {(480<<20)+base_s}")
    I("s_add_u32 s32, s32, s3"); I("s_addc_u32 s33, s33, 0")
    for i in range(12): I(f"v_mov_b32 v{4+i}, s{sST+i}")
    I("v_mov_b32 v3, 0")
    I("v_cmp_eq_u32 vcc, 0, v0")
    I("s_and_saveexec_b64 s[90:91], vcc")
    I("s_cbranch_execz L_end")
    I("global_store_dwordx4 v3, v[4:7], s[32:33]")
    I("global_store_dwordx4 v3, v[8:11], s[32:33] offset:16")
    I("global_store_dwordx4 v3, v[12:15], s[32:33] offset:32")

def main_kernel(cfg):
    global XNT
    XNT = getattr(cfg, "xnt", "")
    P = Prog()
    prologue(P, cfg)
    pro_end = len(P.items)
    entry_vm = [t for _, t in P.vm][-16:]
    assert entry_vm == ["K3"]*4 + ["V1"]*4 + ["K4"]*4 + ["V2"]*4, entry_vm
    P.I(f"s_mov_b32 s{sCNT}, 15")
    P.wait(lg=0)
    P.raw(".p2align 3")
    P.label("L_loop")
    l0 = len(P.items)
    P.lg = [(set(), 'unknown')]
    vm_in = list(P.vm)
    P.vm = [(set(), f"old")]*8 + P.vm[-16:]
    P.vm = [(set(), "K2")]*4 + [(set(), "V0")]*4 + P.vm[-16:]
    for t in range(4):
        Sc, Sn = (S0, S1) if t % 2 == 0 else (S1, S0)
        iteration(P, cfg, t, t, Sc, Sn, {f"V{t}", f"K{t+2}"},
                  [dma_k(f"K{t+5}", (t+1) & 3, cfg), dma_v(f"V{t+3}", 4 + ((t+3) & 3), cfg)], uid=f"_l{t}")
    assert [t for _, t in P.vm][-16:] == ["K7"]*4 + ["V5"]*4 + ["K8"]*4 + ["V6"]*4
    P.I(f"s_sub_u32 s{sCNT}, s{sCNT}, 1")
    P.I(f"s_cmp_lg_u32 s{sCNT}, 0")
    P.I("s_cbranch_scc1 L_loop")
    l1 = len(P.items)
    P.vm = [(set(), x) for x in ["K62"]*4 + ["V60"]*4 + ["K63"]*4 + ["V61"]*4 + ["K64"]*4 + ["V62"]*4]
    W = lambda hc: dma_wo(hc, WOSLOT[hc], cfg)
    iteration(P, cfg, 60, 0, S0, S1, {"V60", "K62"}, [dma_v("V63", 7, cfg), W(0), W(1), W(2)], uid="_60")
    iteration(P, cfg, 61, 1, S1, S0, {"V61", "K63", "K64"}, [W(3), W(4), W(5)], uid="_61")
    iteration(P, cfg, 62, 2, S0, S1, {"V62"}, [W(6), W(7)], do_kread=False, uid="_62")
    iteration(P, cfg, 63, 3, S1, S0, {"V63"}, [W(8)], do_qk=False, do_kread=False, uid="_63")
    epilogue(P, cfg)
    stamp_out(P, cfg, 6, 0)
    P.label("L_end")
    P.I("s_endpgm")
    e0 = len(P.items)
    rescale_sub(P)
    ins = lambda a, b: [x for x in P.items[a:b] if isinstance(x, Ins)]
    errs = check_hazards(ins(0, e0), "linear")
    errs += check_hazards(ins(l1 - 60, l1) + ins(l0, l0 + 60), "backedge")
    sub = ins(e0, len(P.items))
    errs += check_hazards([Ins(x) for x in pv_mfmas()[-3:]] + [Ins("s_cbranch_vccz L"), Ins("s_call_b64 s[70:71], L")] + sub + [Ins("s_barrier")] + [Ins(x) for x in qk_mfmas(S0)[:2]], "rescale")
    for e in errs: print("HAZARD", e, file=sys.stderr)
    assert not errs
    return P

def reduce_kernel(cfg):
    P = Prog(); I = P.I
    I("s_cmp_ge_u32 s2, 448")
    I("s_cbranch_scc1 L_end2")
    if cfg.stamp: I(f"s_memrealtime {sr(sST,2)}")
    I("s_load_dwordx2 s[4:5], s[0:1], 80")
    I("s_load_dwordx2 s[32:33], s[0:1], 96")
    I(f"s_mul_hi_u32 s8, s2, {(2**32 + 27)//28}")
    I("s_mul_i32 s9, s8, 28"); I("s_sub_u32 s9, s2, s9")
    I(f"s_mul_hi_u32 s10, s9, {(2**32 + 6)//7}")
    I("s_mul_i32 s11, s10, 7"); I("s_sub_u32 s11, s9, s11")
    I("v_lshlrev_b32 v1, 4, v0")
    I("s_lshl_b32 s12, s9, 12")
    I("v_add_u32 v1, s12, v1")
    I("v_and_b32 v2, 31, v0")
    I("s_lshl_b32 s13, s10, 5")
    I("v_add_u32 v2, s13, v2")
    I("v_cmp_gt_u32 vcc, 112, v2")
    I("v_mov_b32 v3, 0x40000000")
    I("v_bfe_u32 v4, v0, 5, 1")
    I("v_cndmask_b32 v1, v3, v1, vcc")
    I("v_lshrrev_b32 v5, 6, v0")
    I("v_mul_u32_u24 v2, 1792, v2")
    I("v_lshl_add_u32 v2, v4, 6, v2")
    I("v_lshl_add_u32 v2, v5, 4, v2")
    I("v_cndmask_b32 v2, v3, v2, vcc")
    P.items.append(Ins("s_waitcnt lgkmcnt(0)"))
    I("s_mul_i32 s14, s8, %d" % (16*114688))
    I("s_add_u32 s16, s32, s14"); I("s_addc_u32 s17, s33, 0"); I(f"s_mov_b32 s18, {16*114688}"); I("s_mov_b32 s19, 0x20000")
    for h in range(16):
        I(f"s_mov_b32 s{40+h}, {h*114688}")
    for h in range(16):
        I(f"buffer_load_dwordx4 {vr(16+4*h,4)}, v1, s[16:19], s{40+h} offen{cfg.pld}")
    I("s_and_b32 s14, s8, 7"); I("s_mul_i32 s14, s14, 200704")
    I("s_lshr_b32 s15, s8, 3"); I("s_mul_i32 s15, s15, 896"); I("s_add_u32 s14, s14, s15")
    I("s_lshl_b32 s15, s11, 7"); I("s_add_u32 s14, s14, s15")
    I("s_add_u32 s20, s4, s14"); I("s_addc_u32 s21, s5, 0")
    I(f"s_mov_b32 s22, {111*1792+128}"); I("s_mov_b32 s23, 0x20000")
    for h in range(16):
        for k in range(4):
            r = 16 + 4*h + k
            if h == 0:
                I(f"v_lshlrev_b32 v{8+2*k}, 16, v{r}")
                I(f"v_and_b32 v{9+2*k}, 0xffff0000, v{r}")
            else:
                I(f"v_lshlrev_b32 v6, 16, v{r}")
                I(f"v_and_b32 v7, 0xffff0000, v{r}")
                I(f"v_add_f32 v{8+2*k}, v{8+2*k}, v6")
                I(f"v_add_f32 v{9+2*k}, v{9+2*k}, v7")
    for k in range(4): I(f"v_cvt_pk_bf16_f32 v{16+k}, v{8+2*k}, v{9+2*k}")
    I("buffer_store_dwordx4 v[16:19], v2, s[20:23], 0 offen")
    if cfg.stamp:
        P.wait(vm=0)
        I(f"s_memrealtime {sr(sST+2,2)}")
        P.items.append(Ins("s_waitcnt lgkmcnt(0)"))
        I("s_lshl_b32 s3, s2, 6")
        I(f"s_add_u32 s3, s3, {(480<<20)+256*64}")
        I("s_add_u32 s32, s32, s3"); I("s_addc_u32 s33, s33, 0")
        for i in range(4): I(f"v_mov_b32 v{4+i}, s{sST+i}")
        I("v_mov_b32 v3, 0")
        I("v_cmp_eq_u32 vcc, 0, v0")
        I("s_and_saveexec_b64 s[90:91], vcc")
        I("s_cbranch_execz L_end2")
        I("global_store_dwordx4 v3, v[4:7], s[32:33]")
    P.label("L_end2")
    I("s_endpgm")
    errs = check_hazards([x for x in P.items if isinstance(x, Ins)], "reduce")
    for e in errs: print("HAZARD", e, file=sys.stderr)
    assert not errs
    return P

HEADER = open("concat_heads__gqa_block_cached__mha_block_cached__near_ridge.s.ref").read().split("; Override launch")[0]

def kd(name, vgpr, acc, sgpr=102):
    return f""".p2align 6
.amdhsa_kernel {name}
  .amdhsa_next_free_vgpr {vgpr}
  .amdhsa_next_free_sgpr {sgpr}
  .amdhsa_accum_offset {acc}
  .amdhsa_group_segment_fixed_size 0
  .amdhsa_kernarg_size 104
  .amdhsa_user_sgpr_count 2
  .amdhsa_user_sgpr_kernarg_segment_ptr 1
  .amdhsa_system_sgpr_workgroup_id_x 1
  .amdhsa_float_denorm_mode_32 3
.end_amdhsa_kernel
"""

def build(cfg):
    out = HEADER
    out += f"; @launch kernel={KN} grid=(256,1,1) block=(256,1,1) lds=163840\n"
    out += f"; @launch kernel={K2} grid=(448,1,1) block=(256,1,1) lds=0\n"
    out += '.amdgcn_target "amdgcn-amd-amdhsa--gfx950"\n.text\n'
    out += f".globl {KN}\n.p2align 8\n.type {KN},@function\n{KN}:\n"
    out += "  s_cmp_ge_u32 s2, 256\n  s_cbranch_scc1 L_exit\n"
    if tuple(cfg.polA) == tuple(cfg.polB):
        cfg.pol = cfg.polA
        out += main_kernel(cfg).text()
    else:
        out += "  s_bitcmp1_b32 s2, 4\n  s_cbranch_scc0 L_brA\n  s_branch L_brB\nL_brA:\n"
        cfg.pol = cfg.polA
        out += main_kernel(cfg).text().replace("L_", "LA_")
        out += ".p2align 6\nL_brB:\n"
        cfg.pol = cfg.polB
        out += main_kernel(cfg).text().replace("L_", "LB_")
    out += "L_exit:\n  s_endpgm\n"
    out += f".globl {K2}\n.p2align 8\n.type {K2},@function\n{K2}:\n"
    out += reduce_kernel(cfg).text()
    out += '.section .rodata,"a"\n'
    out += kd(KN, 512, 256) + kd(K2, 80, 80)
    return out

if __name__ == "__main__":
    kw = {}
    outp = sys.argv[1]
    for a in sys.argv[2:]:
        k, v = a.split("=", 1)
        try: v = eval(v)
        except Exception: pass
        kw[k] = v
    open(outp, "w").write(build(Cfg(**kw)))
```

```python
import re

REG = re.compile(r'(?<![\w.])([vas])(?:(\d+)|\[(\d+):(\d+)\])(?![\w])')

def regs_of(op):
    out = []
    for m in REG.finditer(op):
        k = m.group(1)
        if m.group(2) is not None:
            out.append((k, int(m.group(2))))
        else:
            out += [(k, i) for i in range(int(m.group(3)), int(m.group(4)) + 1)]
    for sp in ('vcc', 'm0', 'exec', 'scc'):
        if re.search(r'(?<![\w])' + sp + r'(?![\w])', op):
            out.append((sp, 0))
    return out

TRANS = ('v_exp_f32', 'v_log_f32', 'v_rcp_f32', 'v_rsq_f32', 'v_sqrt_f32')

class Ins:
    __slots__ = ('text', 'op', 'rd', 'wr', 'kind', 'tag')
    def __init__(self, text, tag=None):
        self.text = text; self.tag = tag
        t = text.split(';')[0].strip()
        parts = t.split(None, 1)
        self.op = op = parts[0]
        ops = [o.strip() for o in re.split(r',(?![^\[]*\])', parts[1])] if len(parts) > 1 else []
        rd, wr = [], []
        R = regs_of
        if op.startswith('v_mfma'):
            self.kind = 'mfma'; wr = R(ops[0]); rd = R(ops[1]) + R(ops[2]) + R(ops[3])
        elif op.startswith('ds_read'):
            self.kind = 'ds'; wr = R(ops[0]); rd = R(ops[1])
        elif op.startswith('ds_write'):
            self.kind = 'ds'; rd = sum((R(o) for o in ops), [])
        elif op.startswith('buffer_load'):
            self.kind = 'vm'
            if ' lds' in t:
                rd = sum((R(o) for o in ops), []) + [('m0', 0)]
            else:
                wr = R(ops[0]); rd = sum((R(o) for o in ops[1:]), [])
        elif op.startswith('buffer_store') or op.startswith('global_store'):
            self.kind = 'vm'; rd = sum((R(o) for o in ops), [])
        elif op.startswith('global_load'):
            self.kind = 'vm'; wr = R(ops[0]); rd = sum((R(o) for o in ops[1:]), [])
        elif op.startswith('global_atomic') or op.startswith('buffer_atomic'):
            self.kind = 'vm'
            if ' sc0' in t and op.startswith('global_atomic'):
                wr = R(ops[0]); rd = sum((R(o) for o in ops[1:]), [])
            else:
                rd = sum((R(o) for o in ops), [])
        elif op in ('buffer_wbl2', 'buffer_inv'):
            self.kind = 'vm'
        elif op.startswith('v_cmp'):
            self.kind = 'valu'; wr = R(ops[0]); rd = sum((R(o) for o in ops[1:]), [])
        elif op.startswith('v_permlane32_swap') or op.startswith('v_permlane16_swap'):
            self.kind = 'valu'; wr = R(ops[0]) + R(ops[1]); rd = list(wr)
        elif op.startswith('v_'):
            self.kind = 'valu'; wr = R(ops[0]); rd = sum((R(o) for o in ops[1:]), [])
            if op.startswith('v_fmac') or op.startswith('v_dot2c'): rd += wr
            if op.startswith('v_add_co') or op.startswith('v_addc_co'):
                wr += R(ops[1]); rd = sum((R(o) for o in ops[2:]), [])
        elif op.startswith('s_load') or op in ('s_memtime', 's_memrealtime'):
            self.kind = 'smem'; wr = R(ops[0]); rd = sum((R(o) for o in ops[1:]), [])
        elif op in ('s_waitcnt', 's_barrier', 's_nop', 's_endpgm', 's_branch', 's_sleep', 's_setprio') or op.startswith('s_cbranch'):
            self.kind = 'ctl'
            if op == 's_cbranch_vccz' or op == 's_cbranch_vccnz': rd = [('vcc', 0)]
        elif op.startswith('s_cmp'):
            self.kind = 'salu'; rd = sum((R(o) for o in ops), [])
        elif op in ('s_setpc_b64',):
            self.kind = 'ctl'; rd = R(ops[0])
        elif op.startswith('s_'):
            self.kind = 'salu'; wr = R(ops[0]) if ops else []; rd = sum((R(o) for o in ops[1:]), [])
        else:
            raise ValueError('unknown op ' + text)
        self.rd = set(rd); self.wr = set(wr)
    def states(self):
        if self.op == 's_nop':
            return int(self.text.split()[1]) + 1
        return 1

class Prog:
    def __init__(self):
        self.items = []
        self.lg = []
        self.vm = []
        self.auto = True
    def raw(self, s): self.items.append(s)
    def label(self, s): self.items.append(s + ':')
    def _need(self, q, regs):
        idx = -1
        for i, (d, tag) in enumerate(q):
            if d & regs: idx = i
        return idx
    def wait(self, vm=None, lg=None):
        parts = []
        if vm is not None: vm = min(vm, 63)
        if lg is not None: lg = min(lg, 15)
        if vm is not None and vm < len(self.vm):
            self.vm = self.vm[len(self.vm) - vm:] if vm else []
            parts.append(f'vmcnt({min(vm,63)})')
        if lg is not None and lg < len(self.lg):
            self.lg = self.lg[len(self.lg) - lg:] if lg else []
            parts.append(f'lgkmcnt({min(lg,15)})')
        if parts:
            self.items.append(Ins('s_waitcnt ' + ' '.join(parts)))
    def vm_count_for(self, tags):
        idx = -1
        for i, (d, tag) in enumerate(self.vm):
            if tag in tags: idx = i
        return len(self.vm) - 1 - idx if idx >= 0 else None
    def wait_tags(self, tags, lg=None):
        n = self.vm_count_for(tags)
        self.wait(vm=n, lg=lg)
    def I(self, text, tag=None):
        ins = Ins(text, tag)
        if self.auto and ins.kind in ('mfma', 'valu', 'ds', 'vm'):
            touch = ins.rd | ins.wr
            if ins.kind == 'vm' and ins.op == 'buffer_load_dword': touch = set(ins.rd)
            i = self._need(self.lg, touch)
            j = self._need(self.vm, touch)
            vm = len(self.vm) - 1 - j if j >= 0 else None
            lg = len(self.lg) - 1 - i if i >= 0 else None
            if vm is not None or lg is not None:
                self.wait(vm=vm, lg=lg)
        self.items.append(ins)
        if ins.kind == 'ds':
            self.lg.append((set(ins.wr), tag))
        elif ins.kind == 'vm':
            self.vm.append((set(ins.wr), tag))
            assert len(self.vm) <= 63, 'vmcnt overflow at ' + text
        return ins
    def text(self):
        out = []
        for it in self.items:
            out.append(it if isinstance(it, str) else '  ' + it.text)
        return '\n'.join(out) + '\n'

def check_hazards(seq, name=''):
    errs = []
    n = len(seq)
    def is_vec(r): return r[0] in ('v', 'a')
    for i, a in enumerate(seq):
        dist = 0
        for j in range(i + 1, min(n, i + 24)):
            b = seq[j]
            need = 0
            why = ''
            if a.kind == 'valu':
                w = a.wr
                vw = {r for r in w if is_vec(r)}
                sw = {r for r in w if not is_vec(r)}
                if b.kind == 'mfma' and vw & b.rd: need, why = 2, 'valu->mfma'
                if b.op.startswith('v_permlane') and vw & b.rd: need, why = max(need, 2), 'valu->permlane'
                if (b.op.startswith('v_readfirstlane') or b.op.startswith('v_readlane')) and vw & b.rd: need, why = max(need, 1), 'valu->readlane'
                if a.op.replace('_e32', '').replace('_e64', '') in TRANS and b.kind in ('valu', 'mfma') and vw & b.rd: need, why = max(need, 1), 'trans->valu'
                if sw & b.rd:
                    if b.kind == 'valu': need, why = max(need, 2), 'valu sgpr->valu'
                    if b.kind == 'vm': need, why = max(need, 5), 'valu sgpr->vmem'
                    if b.kind in ('salu', 'ctl'): need, why = max(need, 0), 'valu sgpr->salu'
            if a.kind == 'mfma':
                passes = 8 if '32x32' in a.op else 4
                D = a.wr
                if b.kind == 'mfma':
                    ops = [o.strip() for o in re.split(r',(?![^\[]*\])', b.text.split(None, 1)[1])]
                    ab = set(regs_of(ops[1]) + regs_of(ops[2])); c = set(regs_of(ops[3]))
                    if D & ab: need, why = (12 if passes == 8 else 8), 'mfma D->mfma AB'
                    if D & c and c != D: need, why = max(need, 10 if passes == 8 else 6), 'mfma D->mfma C partial'
                    if D & b.wr and not (D & c) : need, why = max(need, 10 if passes == 8 else 6), 'mfma D->mfma D waw'
                elif b.kind in ('valu', 'ds', 'vm'):
                    if D & (b.rd | b.wr): need, why = (12 if passes == 8 else 8), 'mfma D->valu/mem'
                    ops = [o.strip() for o in re.split(r',(?![^\[]*\])', a.text.split(None, 1)[1])]
                    c = set(regs_of(ops[3]))
                    if b.kind == 'valu' and c & b.wr: need, why = max(need, 7 if passes == 8 else 3), 'mfma C war'
            if a.kind == 'salu' and ('m0', 0) in a.wr and b.kind == 'vm' and ' lds' in b.text: need, why = 1, 'm0->lds dma'
            if a.kind == 'vm' and 'store_dwordx4' in a.op and b.kind in ('valu',):
                ops = [o.strip() for o in re.split(r',(?![^\[]*\])', a.text.split(None, 1)[1])]
                data = set(regs_of(ops[0] if a.op.startswith('buffer') else ops[1]))
                if data & b.wr: need, why = 2, 'store data war'
            if need > dist:
                errs.append(f'{name}: {why}: need {need} have {dist}\n    {a.text}\n    {b.text}')
            dist += b.states()
            if dist >= 20: break
    return errs

def interleave(P, mfmas, gaps, pre=None):
    for i, m in enumerate(mfmas):
        g = [f for f in gaps[i] if f is not None]
        if isinstance(m, list):
            P.I(m[0])
            if len(m) > 1:
                h = len(g) // 2
                g = g[:h] + [m[1]] + g[h:]
        else:
            P.I(m)
        for f in g:
            if callable(f): f()
            elif isinstance(f, tuple): P.I(f[0], f[1])
            else: P.I(f)

def spread(items, ngaps, start, end, gaps):
    n = end - start
    k = len(items)
    for i, it in enumerate(items):
        g = start + (i * n) // k
        gaps[g].append(it)
```

```python
import sys, struct, math
from asmlib import *

KN = "concat_heads__gqa_block_cached__mha_block_cached__near_ridge_kernel"
K2 = "reduce_kernel"
def f32bits(x): return struct.unpack('<I', struct.pack('<f', x))[0]

class Cfg:
    stamp = False
    wnt = ""
    pst = " sc1"
    pld = " sc1"
    T = 24.0
    polA = (" nt", " nt")
    polB = (" nt", " nt")
    noadv = False
    stampmap = {0: 0, 1: 1, 2: 2, 3: 3, 4: 4}
    inkernel = True
    codepf = True
    spinmax = 200000
    pflines = 32
    codesize = 4096
    qabl = ""
    hshift = 0
    sched = {0: ["X0", "W0", "W1", "X1"], 1: ["W2", "W3", "X2"], 2: ["W4", "W5"], 3: ["X3", "W6"], 4: ["W7", "K0"], 5: ["X4", "W8"],
             6: ["W9", "K1"], 7: ["X5", "W10"], 8: ["W11", "K2"], 9: ["X6", "W12"], 10: ["W13", "V0"], 11: ["K3", "V1"], 12: ["K4"], 13: ["V2"]}
    rotq = True
    dmaearly = 0
    l2pf = False
    trace = False
    def __init__(self, **kw):
        for k, v in kw.items(): setattr(self, k, v)

S0, S1, PP = 16, 32, 48
vMC = 56
vL = 58
vTM, vT1 = 62, 63
vKR = 64
vVR = 68
vKD = 76
vVD = 80
vQR = 84
vQD = 100
vXD = 102
vXR = 104
vKR8 = 108
vOD = 112
vOR = 113
vPS = 125
vRI = 126
OO = 128
aV, aK, aQ, aF1 = 0, 64, 128, 192
sX, sK, sV, sWQ, sWO, sP = 36, 40, 44, 48, 52, 56
sKOFF, sVOFF, sWB, sCNT, sC, sT, sTMP = 60, 61, 62, 63, 64, 65, 66
sPO = 68
sWP, sXP, sOP = 35, 69, 93
sRET = 70
sST = 72
sOUT = 88
sG = 92
SLOT = 16384
PSZ = 100352

def vr(b, n): return f"v[{b}:{b+n-1}]"
def ar(b, n): return f"a[{b}:{b+n-1}]"
def sr(b, n): return f"s[{b}:{b+n-1}]"
MF = "v_mfma_f32_16x16x32_bf16"

def stamp(P, cfg, name):
    if cfg.stamp and name in cfg.stampmap:
        i = cfg.stampmap[name]
        P.I(f"s_memrealtime {sr(sST+2*i,2)}")
        if i == 2: P.I("s_memtime s[84:85]")
        if i == 3: P.I("s_memtime s[86:87]")

def emit(P, L):
    for f in L:
        if f is None: continue
        if callable(f): f()
        elif isinstance(f, tuple): P.I(f[0], f[1])
        else: P.I(f)
def group_dma(L):
    out, cur = [], []
    for f in L:
        cur.append(f)
        if isinstance(f, tuple): out.append(cur); cur = []
    assert not cur
    return out
def place_groups(groups, gaps, start, end):
    n = end - start; k = len(groups)
    for i, g in enumerate(groups):
        gaps[start + (i*n)//k] += g

class Gen:
    def __init__(self, cfg, nq, pol, pfx):
        self.cfg, self.nq, self.pol, self.pfx = cfg, nq, pol, pfx
        self.P = Prog()
        self.plan_slots()
    def L(self, s): return f"{self.pfx}_{s}"

    def plan_slots(self):
        sched = self.cfg.sched
        free = list(range(8)); virt = {}
        for st in range(14):
            if st >= 2:
                done = [f"W{i}" for i in range(st)] + [f"X{c}" for c in range(7) if 2*c <= st-1]
                for f in done:
                    if f in virt and virt[f] not in free and not any(virt[g] == virt[f] and order[g] > order[f] for g in virt): free.append(virt[f])
            if st == 0: order = {}
            for f in sched.get(st, []):
                order[f] = len(order)
                if f in ("K0", "K1"): continue
                virt[f] = free.pop(0)
        fixed = {"K2": 2, "V0": 4, "K3": 3, "V1": 5, "K4": 0, "V2": 6}
        cs = {virt[k]: v for k, v in fixed.items()}
        assert len(cs) == 6
        rest = [1, 7]
        for c in range(8):
            if c not in cs: cs[c] = rest.pop(0)
        self.slot = {f: cs[c] for f, c in virt.items()}

    def dma(self, name):
        k, i = name[0], int(name[1:])
        cfg = self.cfg
        if k == "W": return self.dma_wq(i, self.slot[name])
        if k == "X": return self.dma_x(i, self.slot[name])
        if k == "K": return self.dma_k(name, self.slot[name] if name in self.slot else 8 + i, const=i)
        if k == "V": return self.dma_v(name, self.slot[name], const=i)
    def adv(self, reg, step, n, first):
        if first: return []
        return [f"s_add_u32 s{reg}, s{reg}, {step}", f"s_cmp_lg_u32 s{reg}, {step*n}", f"s_cselect_b32 s{reg}, s{reg}, 0"]
    def dma_wq(self, i, slot):
        L = [f"s_add_u32 m0, s{sWB}, {slot*SLOT}"] + self.adv(sWP, 32*8192, 14, i == 0)
        for j in range(4):
            L.append(f"s_add_u32 s{sTMP+(j&1)}, s{sWP}, {2*j*8192 - j*1024}")
            L.append((f"buffer_load_dwordx4 v{vQD+(j&1)}, {sr(sWQ,4)}, s{sTMP+(j&1)} offen offset:{j*1024}{self.cfg.wnt} lds", f"W{i}"))
        return L
    def dma_x(self, c, slot):
        L = [f"s_add_u32 m0, s{sWB}, {slot*SLOT}"] + self.adv(sXP, 128, 7, c == 0)
        for j in range(2*self.nq):
            L.append(f"s_add_u32 s{sTMP+(j&1)}, s{sXP}, {j*(7168-1024)}")
            L.append((f"buffer_load_dwordx4 v{vXD+(j&1)}, {sr(sX,4)}, s{sTMP+(j&1)} offen offset:{j*1024}{self.cfg.wnt} lds", f"X{c}"))
        return L
    def dma_wo(self, hc):
        L = [f"s_add_u32 m0, s{sWB}, {WOSLOT[hc]*SLOT}"] + (self.adv(sOP, 128, 7, hc == 0) if hc % 2 == 0 else [])
        for j in range(4):
            L.append(f"s_add_u32 s{sTMP+(j&1)}, s{sOP}, {(128*(hc & 1) + 8*j) * 896 - j*1024}")
            L.append((f"buffer_load_dwordx4 v{vOD}, {sr(sWO,4)}, s{sTMP+(j&1)} offen offset:{j*1024}{self.cfg.wnt} lds", f"wo{hc}"))
        return L
    def dma_k(self, tag, slot, const=None):
        L = [f"s_add_u32 m0, s{sWB}, {slot*SLOT}"]
        if const is not None: L.append(f"s_mov_b32 s{sKOFF}, {const*SLOT}")
        else: L.append(f"s_add_u32 s{sKOFF}, s{sKOFF}, {0 if self.cfg.noadv else SLOT}")
        for j in range(4):
            L.append((f"buffer_load_dwordx4 v{vKD+j}, {sr(sK,4)}, s{sKOFF} offen offset:{j*1024}{self.pol[0]} lds", tag))
        return L
    def dma_v(self, tag, slot, const=None):
        L = [f"s_add_u32 m0, s{sWB}, {slot*SLOT}"]
        if const is not None: L.append(f"s_mov_b32 s{sVOFF}, {const*SLOT}")
        else: L.append(f"s_add_u32 s{sVOFF}, s{sVOFF}, {0 if self.cfg.noadv else SLOT}")
        for j in range(4):
            L.append((f"buffer_load_dwordx4 v{vVD+j}, {sr(sV,4)}, s{sVOFF} offen offset:{j*1024}{self.pol[1]} lds", tag))
        return L

    def wq_reads(self, i):
        slot = self.slot[f"W{i}"]; F = aV if i % 2 == 0 else aF1
        base = vQR + (8 if slot >= 4 else 0); so = (slot & 3) * SLOT
        return [f"ds_read_b64_tr_b16 {ar(F+4*dt+2*u,2)}, v{base+(dt&7)} offset:{so+u*2048+(dt>>3)*256}" for dt in range(16) for u in range(2)]
    def x_reads(self, c):
        slot = self.slot[f"X{c}"]
        base = vXR + (2 if slot >= 4 else 0); so = (slot & 3) * SLOT
        return [f"ds_read_b128 {ar(aQ+48-16*(c&1)+8*e+4*qt,4)}, v{base+e} offset:{so+qt*2048}" for e in range(2) for qt in range(self.nq)]
    def wq_mfmas(self, i):
        F = aV if i % 2 == 0 else aF1
        xb = aQ + 48 - 16*((i >> 1) & 1) + 8*(i & 1)
        return [f"{MF} {vr(OO+8*dt+4*qt,4)}, {ar(F+4*dt,4)}, {ar(xb+4*qt,4)}, {'0' if i == 0 else vr(OO+8*dt+4*qt,4)}"
                for dt in range(16) for qt in range(self.nq)]
    def k_reads(self, slot):
        base, so = (vKR8, (slot-8)*SLOT) if slot >= 8 else (vKR, slot*SLOT)
        return [f"ds_read_b128 {ar(aK+8*s+4*kt,4)}, v{base+(s&3)} offset:{so+kt*8192+(s>>2)*256}" for s in range(8) for kt in range(2)]
    def qk_mfmas(self, S):
        return [f"{MF} {vr(S+8*qt+4*kt,4)}, {ar(aK+8*s+4*kt,4)}, {ar(aQ+8*s+4*qt,4)}, {'0' if s == 0 else vr(S+8*qt+4*kt,4)}"
                for s in range(8) for kt in range(2) for qt in range(self.nq)]
    def v_reads(self, vslot):
        return [f"ds_read_b64_tr_b16 {ar(aV+4*dt+2*u,2)}, v{vVR+(dt&7)} offset:{vslot*SLOT+u*8192+(dt>>3)*256}" for dt in range(16) for u in range(2)]
    def pv_mfmas(self):
        return [f"{MF} {vr(OO+8*dt+4*qt,4)}, {ar(aV+4*dt,4)}, {vr(PP+4*qt,4)}, {vr(OO+8*dt+4*qt,4)}" for qt in range(self.nq) for dt in range(16)]
    def xlane(self, op, r, t):
        return [f"v_mov_b32 v{t}, v{r}", "s_nop 1", f"v_permlane32_swap_b32 v{r}, v{t}", f"{op} v{r}, v{r}, v{t}",
                f"v_mov_b32 v{t}, v{r}", "s_nop 1", f"v_permlane16_swap_b32 v{r}, v{t}", f"{op} v{r}, v{r}, v{t}"]
    def max8(self, d, S):
        return [f"v_max3_f32 v{d}, v{S}, v{S+1}, v{S+2}", f"v_max3_f32 v{d}, v{d}, v{S+3}, v{S+4}",
                f"v_max3_f32 v{d}, v{d}, v{S+5}, v{S+6}", f"v_max_f32 v{d}, v{d}, v{S+7}"]
    def maxall(self, S):
        n = 8*self.nq
        L = [f"v_max3_f32 v{vTM}, v{S}, v{S+1}, v{S+2}"]
        i = 3
        while i + 1 < n:
            L.append(f"v_max3_f32 v{vTM}, v{vTM}, v{S+i}, v{S+i+1}"); i += 2
        L.append(f"v_max_f32 v{vTM}, v{vTM}, v{S+n-1}")
        return L
    def fmas(self, S): return [f"v_fma_f32 v{S+i}, v{S+i}, s{sC}, -v{vMC+(i>>3)}" for i in range(8*self.nq)]

    def setup_a(self):
        P, cfg = self.P, self.cfg; I = P.I
        I("v_lshrrev_b32 v3, 5, v1")
        I("v_and_b32 v4, 31, v1")
        I("v_lshl_add_u32 v5, v2, 3, v3")
        I(f"s_lshl_b32 s{sWB}, s34, 12")
        if cfg.rotq:
            I("s_cmp_lg_u32 s6, 7"); I("s_cselect_b32 s3, s6, 0")
        else:
            I("s_mov_b32 s3, 0")
        I(f"s_lshl_b32 s{sWP}, s3, 19"); I(f"s_lshl_b32 s{sXP}, s3, 7"); I(f"s_lshl_b32 s{sOP}, s3, 7")
        I(f"s_mul_i32 s{sPO}, s3, 14336")
        I("v_lshrrev_b32 v6, 3, v1")
        I("v_lshl_add_u32 v6, v2, 5, v6")
        I("v_mul_u32_u24 v6, 896, v6")
        I("v_and_b32 v8, 7, v1")
        I("v_lshrrev_b32 v9, 4, v1")
        I("v_xor_b32 v7, v8, v9")
        I(f"v_lshl_add_u32 v{vXD}, v7, 4, v6")
        I("v_xor_b32 v7, 4, v7")
        I(f"v_lshl_add_u32 v{vXD+1}, v7, 4, v6")
        I("v_and_b32 v7, 1, v2")
        I("v_lshl_add_u32 v7, v7, 2, v3")
        I("v_lshlrev_b32 v7, 1, v7")
        I("v_xor_b32 v7, v7, v4")
        I("v_lshlrev_b32 v10, 13, v5")
        I(f"v_lshl_add_u32 v{vQD}, v7, 4, v10")
        I("v_xor_b32 v7, 4, v7")
        I(f"v_lshl_add_u32 v{vQD+1}, v7, 4, v10")
        P.items.append(Ins("s_waitcnt lgkmcnt(0)"))
        stamp(P, cfg, "karg")
        I("s_cmp_eq_u32 s5, 0")
        I("s_cselect_b64 s[8:9], s[8:9], s[18:19]")
        I("s_cselect_b64 s[14:15], s[14:15], s[24:25]")
        I("s_cselect_b64 s[10:11], s[10:11], s[20:21]")
        I("s_cselect_b64 s[12:13], s[12:13], s[22:23]")
        I("s_cselect_b64 s[16:17], s[16:17], s[26:27]")
        I("s_mul_i32 s3, s6, 100352")
        I(f"s_add_u32 s{sX}, s8, s3"); I(f"s_addc_u32 s{sX+1}, s9, 0")
        I(f"s_mov_b32 s{sX+2}, 100352"); I(f"s_mov_b32 s{sX+3}, 0x20000")
        I("s_lshl_b32 s3, s4, 9")
        I(f"s_add_u32 s{sWQ}, s14, s3"); I(f"s_addc_u32 s{sWQ+1}, s15, 0")
        I(f"s_mov_b32 s{sWQ+2}, {447*8192+512}"); I(f"s_mov_b32 s{sWQ+3}, 0x20000")
    def setup_b(self):
        P, cfg = self.P, self.cfg; I = P.I
        I("s_lshl_b32 s3, s6, 4"); I("s_add_u32 s3, s3, s4")
        I("s_lshr_b32 s7, s3, 1")
        I("s_cmp_eq_u32 s5, 0")
        I("s_cselect_b32 s3, s7, s3")
        I("s_lshl_b32 s3, s3, 20")
        I(f"s_add_u32 s{sK}, s10, s3"); I(f"s_addc_u32 s{sK+1}, s11, 0")
        I(f"s_mov_b32 s{sK+2}, 0x100000"); I(f"s_mov_b32 s{sK+3}, 0x20000")
        I(f"s_add_u32 s{sV}, s12, s3"); I(f"s_addc_u32 s{sV+1}, s13, 0")
        I(f"s_mov_b32 s{sV+2}, 0x100000"); I(f"s_mov_b32 s{sV+3}, 0x20000")
        I("v_lshlrev_b32 v10, 9, v5")
        for j in range(4):
            I(f"v_add_u32 v7, {2*j}, v5"); I("v_and_b32 v7, 15, v7"); I("v_xor_b32 v7, v7, v4")
            I(f"v_lshl_add_u32 v{vKD+j}, v7, 4, v10")
            I(f"v_lshl_add_u32 v7, v3, 1, {4*j}"); I("v_xor_b32 v7, v7, v4")
            I(f"v_lshl_add_u32 v{vVD+j}, v7, 4, v10")
        I("v_bfe_u32 v11, v1, 2, 2"); I("v_and_b32 v12, 3, v1"); I("v_and_b32 v13, 15, v1")
        I("v_lshl_add_u32 v6, v9, 3, v11"); I("v_lshlrev_b32 v6, 9, v6"); I("v_lshl_add_u32 v6, v12, 3, v6")
        I("v_and_b32 v7, 1, v9"); I("v_lshl_add_u32 v14, v7, 2, v11")
        for d in range(8):
            I(f"v_xor_b32 v7, {d}, v14")
            I(f"v_lshl_add_u32 v{vQR+d}, v7, 5, v6")
            I(f"v_add_u32 v{vQR+8+d}, 0x10000, v{vQR+d}")
        I("v_lshl_add_u32 v6, v2, 5, v13"); I("v_lshlrev_b32 v6, 7, v6")
        I("v_lshrrev_b32 v7, 1, v13"); I("v_xor_b32 v7, v7, v9")
        I(f"v_lshl_add_u32 v{vXR}, v7, 4, v6")
        I("v_xor_b32 v7, 4, v7")
        I(f"v_lshl_add_u32 v{vXR+1}, v7, 4, v6")
        I(f"v_add_u32 v{vXR+2}, 0x10000, v{vXR}"); I(f"v_add_u32 v{vXR+3}, 0x10000, v{vXR+1}")
    def setup_c(self):
        cfg = self.cfg
        L = []; A = L.append
        A("s_mul_i32 s3, s4, 229376")
        A(f"s_add_u32 s{sWO}, s16, s3"); A(f"s_addc_u32 s{sWO+1}, s17, 0")
        A(f"s_mov_b32 s{sWO+2}, 229376"); A(f"s_mov_b32 s{sWO+3}, 0x20000")
        A("s_lshl_b32 s3, s5, 3"); A(f"s_add_u32 s{sG}, s3, s6")
        A(f"s_mul_i32 s3, s{sG}, {16*PSZ}")
        A(f"s_add_u32 s{sP}, s32, s3"); A(f"s_addc_u32 s{sP+1}, s33, 0")
        A(f"s_mov_b32 s{sP+2}, {16*PSZ}"); A(f"s_mov_b32 s{sP+3}, 0x20000")
        c = math.log2(math.e) / 16.0
        A(f"s_mov_b32 s{sC}, {f32bits(c):#x}")
        A(f"s_mov_b32 s{sT}, {f32bits(cfg.T):#x}")
        A("v_lshl_add_u32 v6, v9, 2, v11"); A("v_lshlrev_b32 v15, 7, v6"); A("v_lshlrev_b32 v6, 9, v6")
        A("v_lshl_add_u32 v6, v12, 3, v6"); A("v_add_u32 v6, 0x10000, v6")
        for d in range(8):
            A(f"v_xor_b32 v7, {d}, v14"); A(f"v_lshl_add_u32 v{vVR+d}, v7, 5, v6")
        A("v_xor_b32 v6, v9, v13"); A("v_lshlrev_b32 v10, 9, v13")
        for s in range(4):
            A(f"v_xor_b32 v7, {4*s}, v6"); A(f"v_lshl_add_u32 v{vKR+s}, v7, 4, v10")
            A(f"v_add_u32 v{vKR8+s}, 0x20000, v{vKR+s}")
        A("v_lshrrev_b32 v6, 3, v1"); A("v_lshl_add_u32 v6, v2, 5, v6"); A("v_mul_u32_u24 v6, 896, v6")
        A("v_lshlrev_b32 v7, 1, v9"); A("v_xor_b32 v7, v7, v8")
        A(f"v_lshl_add_u32 v{vOD}, v7, 4, v6")
        A("v_lshl_add_u32 v15, v12, 3, v15"); A("v_lshrrev_b32 v6, 1, v14")
        for nt in range(4):
            A(f"v_xor_b32 v7, {nt}, v6"); A(f"v_lshl_add_u32 v{vOR+nt}, v7, 5, v15")
            A(f"v_add_u32 v{vOR+4+nt}, 0x10000, v{vOR+nt}"); A(f"v_add_u32 v{vOR+8+nt}, 0x20000, v{vOR+nt}")
        A(f"s_mul_i32 s3, s4, {PSZ}"); A(f"s_add_u32 s3, s3, s{sWB}")
        A(f"v_lshl_add_u32 v{vPS}, v1, 4, s3")
        return L

    def qconv(self, s, qt):
        X = S1 + 4*((self.nq*s + qt) & 3)
        a, b = OO + 16*s + 4*qt, OO + 16*s + 8 + 4*qt
        L = [f"v_cvt_pk_bf16_f32 v{X}, v{a}, v{a+1}", f"v_cvt_pk_bf16_f32 v{X+1}, v{a+2}, v{a+3}",
             f"v_cvt_pk_bf16_f32 v{X+2}, v{b}, v{b+1}", f"v_cvt_pk_bf16_f32 v{X+3}, v{b+2}, v{b+3}"]
        M = [f"v_permlane32_swap_b32 v{X}, v{X+2}", f"v_permlane32_swap_b32 v{X+1}, v{X+3}"]
        N = [f"v_permlane16_swap_b32 v{X}, v{X+2}", f"v_permlane16_swap_b32 v{X+1}, v{X+3}"]
        W = [f"v_accvgpr_write_b32 a{aQ+8*s+4*qt+k}, v{X+k}" for k in range(4)]
        return L, M, N, W

    def prologue(self):
        P, cfg, nq = self.P, self.cfg, self.nq; I = P.I
        NG = 16*nq
        self.setup_a()
        g0 = [g for f in cfg.sched[0] for g in group_dma(self.dma(f))]
        nfirst = len(group_dma(self.dma("X0"))) + 4
        for g in g0[:nfirst]: emit(P, g)
        stamp(P, cfg, "ld0")
        P2 = self.P = Prog(); self.setup_b(); self.P = P
        rest = [x.text for x in P2.items] + self.setup_c()
        if cfg.codepf and nq == 1:
            n = cfg.pflines
            rest += ["s_lshr_b32 s3, s2, 3", f"s_mul_i32 s3, s3, {n}", f"v_min_u32 v6, {n-1}, v1", "v_add_u32 v6, s3, v6",
                     "v_lshlrev_b32 v6, 7, v6", f"v_min_u32 v6, {cfg.codesize - 8}, v6", "v_mov_b32 v7, s95",
                     "v_add_co_u32 v6, vcc, s94, v6", "s_nop 1", "v_addc_co_u32 v7, vcc, 0, v7, vcc",
                     "global_load_dword v127, v[6:7], off"]
        pos = 0; g1 = g0[nfirst:]
        for k, g in enumerate(g1):
            emit(P, g)
            nxt = min(len(rest), 6*(k+1))
            while nxt < len(rest) and not rest[nxt].startswith("v_"): nxt += 1
            nxt = max(nxt, pos)
            emit(P, rest[pos:nxt]); pos = nxt
        emit(P, rest[pos:])
        stamp(P, cfg, "ldall")
        refill = {k: v for k, v in cfg.sched.items() if k}
        parts = [self.qconv(s, qt) for s in range(8) for qt in range(nq)]
        conv = []
        for k in range(len(parts) + 3):
            st = []
            for d in range(4):
                if 0 <= k-d < len(parts): st += parts[k-d][d]
            if k >= len(parts): st.append("s_nop 1")
            conv.append(st)
        for i in range(15):
            if i == 0: tags = {"W0", "X0", "W1"}
            elif i < 14: tags = {f"W{i}"} | ({f"X{i//2}"} if i % 2 == 0 else set())
            else: tags = {"K0", "K1"}
            if i != 1:
                P.wait_tags(tags, lg=0)
                I("s_barrier")
            stamp(P, cfg, f"q{i}")
            if i == 0:
                stamp(P, cfg, 1)
                emit(P, self.x_reads(0) + self.wq_reads(0))
                continue
            gaps = [[] for _ in range(NG)]
            rd = (self.x_reads(i//2) if i % 2 == 0 else []) + self.wq_reads(i) if i < 14 else self.k_reads(8)
            spread(rd, NG, 0, (NG*11)//16 if i < 14 else NG//2, gaps)
            groups = [g for f in refill.get(i, []) for g in group_dma(self.dma(f))]
            if groups: place_groups(groups, gaps, (NG*9)//16 if len(groups) <= 4 else (NG*2)//16, NG)
            if i == 14:
                k = 0
                while True:
                    g = 2*nq*(k//nq) + 2*nq - 1 + (6 if nq == 2 else 4) + (2*(k % nq))
                    if g >= NG: break
                    gaps[g] += conv.pop(0); k += 1
            interleave(P, self.wq_mfmas(i-1), gaps)
        I("s_nop 3")
        for st in conv: emit(P, st)
        stamp(P, cfg, 2)
        gaps = [[] for _ in range(NG)]
        kr = self.k_reads(9)
        for k in range(16): gaps[nq*k + nq - 1].append(kr[k])
        zero = [f"v_mov_b64 v[{OO+8*dt+4*qt+z}:{OO+8*dt+4*qt+z+1}], 0" for dt in range(16) for qt in range(nq) for z in (0, 2)]
        spread(zero[:-4], NG, 0, NG, gaps)
        interleave(P, self.qk_mfmas(S0), gaps)
        for k in range(2*nq): I(f"v_mov_b32 v{vL+k}, 0")
        emit(P, zero[-4:])
        if nq == 1: I("s_nop 1")
        for qt in range(nq): emit(P, self.max8(vMC+qt, S0+8*qt))
        if nq == 2:
            a = self.xlane("v_max_f32", vMC, vT1); b = self.xlane("v_max_f32", vMC+1, vTM)
            emit(P, [a[0], b[0], "s_nop 0", a[2], b[2], a[3], b[3], a[4], b[4], "s_nop 0", a[6], b[6], a[7], b[7]])
        else:
            emit(P, self.xlane("v_max_f32", vMC, vT1))
        for qt in range(nq): I(f"v_mul_f32 v{vMC+qt}, s{sC}, v{vMC+qt}")
        emit(P, self.fmas(S0))
        stamp(P, cfg, "pre")

    def iteration(self, tm, Sc, Sn, need, dmas, do_qk=True, do_kread=True, uid=""):
        P, cfg, nq = self.P, self.cfg, self.nq; I = P.I
        NG = 16*nq; n = 8*nq
        P.wait_tags(need, lg=0)
        I("s_barrier")
        if cfg.trace and uid == "l1":
            I(f"s_mov_b32 m0, s{sCNT}")
            I("s_nop 3")
            I("v_writelane_b32 v98, s96, m0")
            I("v_writelane_b32 v99, s98, m0")
        if cfg.trace and uid == "l0":
            I("s_memrealtime s[96:97]")
            I("s_memtime s[98:99]")
        ex = [f"v_exp_f32 v{Sc+i}, v{Sc+i}" for i in range(n)]
        add = [f"v_add_f32 v{vL+2*(i>>3)+(i&1)}, v{vL+2*(i>>3)+(i&1)}, v{Sc+i}" for i in range(n)]
        cvt = [f"v_cvt_pk_bf16_f32 v{PP+i}, v{Sc+2*i}, v{Sc+2*i+1}" for i in range(4*nq)]
        vrd = self.v_reads(tm)
        g1 = [[] for _ in range(NG)]; g2 = [[] for _ in range(NG)]
        groups = [g for d in dmas for g in group_dma(d)]
        if do_qk and cfg.dmaearly and len(groups) <= 8:
            place_groups(groups, g1, 0, NG//2 if cfg.dmaearly == 1 else NG); groups = []
        if do_qk:
            spread(vrd, NG, 0, NG, g1)
            if nq == 2:
                spread(ex, NG, 0, NG, g1)
                for k in range(4): g1[18 + 3*k].append(cvt[k])
                for k in range(4): g2[1 + 2*k].append(cvt[4+k])
            else:
                spread(ex, NG, 0, 10, g1)
                for k in range(4): g1[11 + k].append(cvt[k])
            interleave(P, self.qk_mfmas(Sn), g1)
        else:
            for i in range(n):
                emit(P, vrd[(32//n)*i:(32//n)*(i+1)])
                I(ex[i])
            I("s_nop 0")
            emit(P, cvt)
            I("s_nop 1")
        if do_kread: spread(self.k_reads((tm+2) & 3), NG, 0, (NG*10)//16, g2)
        spread(add, NG, 0, NG//2, g2)
        if do_qk:
            spread(self.fmas(Sn), NG, NG//4 + 1, (NG*3)//4, g2)
            spread(self.maxall(Sn), NG, (NG*3)//4 - 1, NG-2, g2)
            g2[NG-2].append(f"v_cmp_lt_f32 vcc, s{sT}, v{vTM}")
        if groups: place_groups(groups, g2, NG//2 if len(groups) <= 8 else 0, NG)
        interleave(P, self.pv_mfmas(), g2)
        if do_qk:
            I(f"s_cbranch_vccz {self.L('skip'+uid)}")
            I(f"s_call_b64 {sr(sRET,2)}, {self.L('rescale%d' % Sn)}")
            P.label(self.L('skip'+uid))

    def rescale_sub(self, S):
        P, nq = self.P, self.nq; I = P.I
        P.label(self.L('rescale%d' % S))
        I("s_nop 7")
        for qt in range(nq):
            emit(P, self.max8(vTM, S+8*qt))
            emit(P, self.xlane("v_max_f32", vTM, vT1))
            I(f"v_max_f32 v{vTM}, 0, v{vTM}")
            I(f"v_add_f32 v{vMC+qt}, v{vMC+qt}, v{vTM}")
            I(f"v_exp_f32 v{vT1}, -v{vTM}")
            for i in range(8): I(f"v_sub_f32 v{S+8*qt+i}, v{S+8*qt+i}, v{vTM}")
            for k in range(2): I(f"v_mul_f32 v{vL+2*qt+k}, v{vL+2*qt+k}, v{vT1}")
            for dt in range(16):
                for r in range(4): I(f"v_mul_f32 v{OO+8*dt+4*qt+r}, v{OO+8*dt+4*qt+r}, v{vT1}")
        I("s_nop 1")
        I(f"s_setpc_b64 {sr(sRET,2)}")

    def wo_reads(self, hc):
        slot = WOSLOT[hc]; F = aV if hc % 2 == 0 else aF1
        base = vOR + 4*(slot >> 2); so = (slot & 3) * SLOT
        return [f"ds_read_b64_tr_b16 {ar(F+4*(4*s+nt)+2*u,2)}, v{base+nt} offset:{so+s*4096+u*2048}" for s in range(4) for nt in range(4) for u in range(2)]
    def wo_mfmas(self, hc):
        F = aV if hc % 2 == 0 else aF1
        acc = (S0, 192)[(hc >> 1) & 1]
        return [f"{MF} {vr(acc+8*nt+4*qt,4)}, {ar(F+4*(4*s+nt),4)}, {vr(OO+8*(4*(hc&1)+s)+4*qt,4)}, {'0' if (hc % 2 == 0 and s == 0) else vr(acc+8*nt+4*qt,4)}"
                for s in range(4) for nt in range(4) for qt in range(self.nq)]
    def norm_ops(self, s):
        L = []
        for qt in range(self.nq):
            for e in range(2):
                b = OO + 16*s + 8*e + 4*qt
                L += [f"v_mul_f32 v{b+k}, v{b+k}, v{vRI+qt}" for k in range(4)]
        for qt in range(self.nq):
            for e in range(2):
                b = OO + 16*s + 8*e + 4*qt; d = OO + 8*s + 4*qt + 2*e
                L += [f"v_cvt_pk_bf16_f32 v{d}, v{b}, v{b+1}", f"v_cvt_pk_bf16_f32 v{d+1}, v{b+2}, v{b+3}"]
        return L
    def out_ops(self, c):
        acc = (S0, 192)[c & 1]; T = 224 + 16*(c & 1)
        L = [lambda a=self.adv(sPO, 14336, 7, c == 0): emit(self.P, a)]
        for qt in range(self.nq):
            for p in range(2):
                d = T + 8*qt + 4*p
                for e in range(2):
                    b = acc + 8*(2*p+e) + 4*qt
                    L += [f"v_cvt_pk_bf16_f32 v{d+2*e}, v{b}, v{b+1}", f"v_cvt_pk_bf16_f32 v{d+2*e+1}, v{b+2}, v{b+3}"]
                L.append((f"buffer_store_dwordx4 {vr(d,4)}, v{vPS}, {sr(sP,4)}, s{sPO} offen offset:{(2*qt+p)*1024}{self.cfg.pst}", f"st{c}"))
        return L

    def epilogue(self):
        P, cfg, nq = self.P, self.cfg, self.nq; I = P.I
        NG = 16*nq
        stamp(P, cfg, 3)
        for qt in range(nq):
            I(f"v_add_f32 v{vL+2*qt}, v{vL+2*qt}, v{vL+2*qt+1}")
            emit(P, self.xlane("v_add_f32", vL+2*qt, vT1))
            I(f"v_rcp_f32 v{vRI+qt}, v{vL+2*qt}")
        for i in range(15):
            P.wait_tags({f"wo{i}"} if i < 14 else set(), lg=0)
            if i < 14: I("s_barrier")
            stamp(P, cfg, f"o{i}")
            if i == 0:
                rd = self.wo_reads(0)
                emit(P, self.dma_wo(9))
                emit(P, rd[:8])
                for s in range(4):
                    emit(P, self.norm_ops(s))
                    emit(P, rd[8+6*s:14+6*s])
                continue
            gaps = [[] for _ in range(NG)]
            if i < 14: spread(self.wo_reads(i), NG, 0, (NG*11)//16, gaps)
            if i == 1: spread(sum((self.norm_ops(s) for s in range(4, 8)), []), NG, 0, NG, gaps)
            if 1 <= i <= 4: place_groups(group_dma(self.dma_wo(i+9)), gaps, (NG*11)//16, NG)
            if i >= 3 and i % 2 == 1: spread(self.out_ops((i-3)//2), NG, NG//4, NG, gaps)
            interleave(P, self.wo_mfmas(i-1), gaps)
        I("s_nop 7")
        emit(P, self.out_ops(6))
        stamp(P, cfg, 4)

    def final_reduce(self):
        P, cfg, nq = self.P, self.cfg, self.nq; I = P.I
        I(f"s_and_b32 s3, s{sG}, 7"); I("s_mul_i32 s3, s3, 200704")
        I(f"s_lshr_b32 s7, s{sG}, 3"); I("s_mul_i32 s7, s7, 896"); I("s_add_u32 s3, s3, s7")
        I(f"s_add_u32 s{sOUT}, s28, s3"); I(f"s_addc_u32 s{sOUT+1}, s29, 0")
        I(f"s_mov_b32 s{sOUT+2}, {111*1792+896}"); I(f"s_mov_b32 s{sOUT+3}, 0x20000")
        I("v_mbcnt_lo_u32_b32 v1, -1, 0"); I("v_mbcnt_hi_u32_b32 v1, -1, v1")
        I("s_lshl_b32 s3, s4, 10"); I("s_mul_i32 s7, s34, 14336"); I("s_add_u32 s3, s3, s7")
        I("v_lshl_add_u32 v2, v1, 4, s3")
        I("s_lshr_b32 s3, s4, 1"); I("s_mul_i32 s3, s3, 28672")
        I("s_and_b32 s7, s4, 1"); I("s_lshl_b32 s7, s7, 6"); I("s_add_u32 s3, s3, s7")
        I("s_lshl_b32 s7, s34, 7"); I("s_add_u32 s3, s3, s7")
        I("v_and_b32 v3, 15, v1"); I("v_mul_u32_u24 v3, 1792, v3")
        I("v_lshrrev_b32 v4, 4, v1"); I("v_lshl_add_u32 v3, v4, 4, v3"); I("v_add_u32 v3, s3, v3")
        I(f"s_lshl_b32 s3, s{sG}, 4")
        I("v_mov_b32 v4, s3"); I("v_mov_b32 v5, 1")
        P.wait(vm=0)
        I("s_barrier")
        stamp(P, cfg, "drain")
        if nq == 1:
            I("s_mov_b64 exec, 1")
            I("global_atomic_add v4, v5, s[30:31]")
            I("s_cmp_ge_u32 s4, 14")
            I(f"s_cbranch_scc1 {self.L('done')}")
            I(f"s_mov_b32 s{sCNT}, {cfg.spinmax}")
            P.label(self.L("poll"))
            I("global_load_dword v6, v4, s[30:31] sc1")
            I(f"s_sub_u32 s{sCNT}, s{sCNT}, 1")
            P.wait(vm=0)
            I("v_readfirstlane_b32 s3, v6")
            I(f"s_cmp_eq_u32 s{sCNT}, 0")
            I(f"s_cbranch_scc1 {self.L('go')}")
            I("s_cmp_ge_u32 s3, 16")
            I(f"s_cbranch_scc1 {self.L('go')}")
            I("s_sleep 1")
            I(f"s_branch {self.L('poll')}")
            P.label(self.L("go"))
            I("s_mov_b64 exec, -1")
        else:
            I("s_cmp_ge_u32 s4, 14")
            I(f"s_cbranch_scc1 {self.L('done')}")
        I("s_barrier")
        stamp(P, cfg, "go")
        nb = 2 if nq == 2 else 1
        for b in range(nb):
            for h in range(16):
                I(f"s_mov_b32 s{sTMP+(h&1)}, {h*PSZ + b*4*14336}")
                I(f"buffer_load_dwordx4 {vr(128+64*b+4*h,4)}, v2, {sr(sP,4)}, s{sTMP+(h&1)} offen{cfg.pld}")
        for b in range(nb):
            A = 8 + 8*b
            for h in range(16):
                for k in range(4):
                    r = 128 + 64*b + 4*h + k
                    if h == 0:
                        I(f"v_lshlrev_b32 v{A+2*k}, 16, v{r}"); I(f"v_and_b32 v{A+1+2*k}, 0xffff0000, v{r}")
                    else:
                        I(f"v_lshlrev_b32 v6, 16, v{r}"); I(f"v_and_b32 v7, 0xffff0000, v{r}")
                        I(f"v_add_f32 v{A+2*k}, v{A+2*k}, v6"); I(f"v_add_f32 v{A+1+2*k}, v{A+1+2*k}, v7")
            D = 24 + 4*b
            for k in range(4): I(f"v_cvt_pk_bf16_f32 v{D+k}, v{A+2*k}, v{A+1+2*k}")
            I("s_nop 1")
            I(f"v_permlane32_swap_b32 v{D}, v{D+2}"); I(f"v_permlane32_swap_b32 v{D+1}, v{D+3}")
            I("s_nop 1")
            I(f"v_permlane16_swap_b32 v{D}, v{D+2}"); I(f"v_permlane16_swap_b32 v{D+1}, v{D+3}")
            I(f"buffer_store_dwordx4 {vr(D,4)}, v3, {sr(sOUT,4)}, 0 offen offset:{b*512}")
        P.label(self.L("done"))

    def stamp_out(self):
        P, cfg = self.P, self.cfg; I = P.I
        if not cfg.stamp or self.nq != cfg.__dict__.get("stampnq", 2): return
        P.items.append(Ins("s_waitcnt vmcnt(0)"))
        I(f"s_memrealtime {sr(sST+2*5,2)}")
        P.items.append(Ins("s_waitcnt lgkmcnt(0)"))
        I("s_cmp_eq_u32 s34, %d" % (0 if self.nq == 2 else 3))
        I(f"s_cbranch_scc0 {self.L('end')}")
        I("s_lshl_b32 s3, s2, 6")
        I(f"s_add_u32 s3, s3, {480<<20}")
        I("s_add_u32 s32, s32, s3"); I("s_addc_u32 s33, s33, 0")
        I("v_mov_b32 v20, v98"); I("v_mov_b32 v21, v99")
        for i in range(12): I(f"v_mov_b32 v{4+i}, s{sST+i}")
        I("s_sub_u32 s84, s86, s84")
        I("s_getreg_b32 s85, hwreg(HW_REG_XCC_ID)")
        I("v_mov_b32 v16, s84"); I("v_mov_b32 v17, 0"); I("v_mov_b32 v18, s85"); I("v_mov_b32 v19, 0")
        if cfg.trace:
            I("v_mbcnt_lo_u32_b32 v3, -1, 0"); I("v_lshlrev_b32 v3, 2, v3")
            I("s_lshl_b32 s3, s2, 6"); I("s_add_u32 s3, s3, 0x10000"); I("v_add_u32 v3, s3, v3")
            I("s_mov_b64 exec, 0xffff")
            I("global_store_dword v3, v20, s[32:33]")
            I("global_store_dword v3, v21, s[32:33] offset:64")
        I("v_mov_b32 v3, 0")
        I("s_mov_b64 exec, 1")
        I("global_store_dwordx4 v3, v[4:7], s[32:33]")
        I("global_store_dwordx4 v3, v[8:11], s[32:33] offset:16")
        I("global_store_dwordx4 v3, v[12:15], s[32:33] offset:32")
        I("global_store_dwordx4 v3, v[16:19], s[32:33] offset:48")

    def build(self):
        P, cfg = self.P, self.cfg
        self.prologue()
        assert [t for _, t in P.vm][-16:] == ["K3"]*4 + ["V1"]*4 + ["K4"]*4 + ["V2"]*4, [t for _, t in P.vm]
        P.I(f"s_mov_b32 s{sCNT}, 15")
        P.raw(".p2align 3")
        P.label(self.L("loop"))
        l0 = len(P.items)
        P.lg = [(set(), 'unknown')]
        P.vm = [(set(), "K2")]*4 + [(set(), "V0")]*4 + P.vm[-16:]
        for t in range(4):
            Sc, Sn = (S0, S1) if t % 2 == 0 else (S1, S0)
            self.iteration(t, Sc, Sn, {f"V{t}", f"K{t+2}"},
                           [self.dma_k(f"K{t+5}", (t+1) & 3), self.dma_v(f"V{t+3}", 4 + ((t+3) & 3))], uid=f"l{t}")
        assert [t for _, t in P.vm][-16:] == ["K7"]*4 + ["V5"]*4 + ["K8"]*4 + ["V6"]*4
        P.I(f"s_sub_u32 s{sCNT}, s{sCNT}, 1")
        P.I(f"s_cmp_lg_u32 s{sCNT}, 0")
        P.I(f"s_cbranch_scc1 {self.L('loop')}")
        l1 = len(P.items)
        P.vm = [(set(), x) for x in ["K62"]*4 + ["V60"]*4 + ["K63"]*4 + ["V61"]*4 + ["K64"]*4 + ["V62"]*4]
        W = self.dma_wo
        self.iteration(0, S0, S1, {"V60", "K62"}, [self.dma_v("V63", 7), W(0), W(1), W(2)], uid="60")
        self.iteration(1, S1, S0, {"V61", "K63", "K64"}, [W(3), W(4), W(5)], uid="61")
        self.iteration(2, S0, S1, {"V62"}, [W(6), W(7)], do_kread=False, uid="62")
        self.iteration(3, S1, S0, {"V63"}, [W(8)], do_qk=False, do_kread=False, uid="63")
        self.epilogue()
        if cfg.inkernel: self.final_reduce()
        self.stamp_out()
        P.label(self.L("end"))
        P.I("s_endpgm")
        e0 = len(P.items)
        self.rescale_sub(S0)
        e1 = len(P.items)
        self.rescale_sub(S1)
        ins = lambda a, b: [x for x in P.items[a:b] if isinstance(x, Ins)]
        errs = check_hazards(ins(0, e0), "linear")
        errs += check_hazards(ins(l1 - 60, l1) + ins(l0, l0 + 60), "backedge")
        for (a, b, S) in ((e0, e1, S0), (e1, len(P.items), S1)):
            errs += check_hazards([Ins(x) for x in self.pv_mfmas()[-3:]] + [Ins(f"v_cmp_lt_f32 vcc, s{sT}, v{vTM}"), Ins("s_cbranch_vccz L"), Ins("s_call_b64 s[70:71], L")]
                                  + ins(a, b) + [Ins("s_barrier")] + [Ins(x) for x in self.qk_mfmas(S0+S1-S)[:2]] + [Ins(f"v_exp_f32 v{S}, v{S}")], "rescale")
        for e in errs: print("HAZARD", e, file=sys.stderr)
        assert not errs
        return P.text()

WOSLOT = {0: 8, 1: 9, 2: 1, 3: 0, 4: 2, 5: 4, 6: 3, 7: 5, 8: 6, 9: 7, 10: 8, 11: 9, 12: 1, 13: 0}

def reduce_kernel(cfg):
    P = Prog(); I = P.I
    I("s_cmp_ge_u32 s2, 392")
    I("s_cbranch_scc1 L_end2")
    if cfg.stamp: I(f"s_memrealtime {sr(sST,2)}")
    I("s_load_dwordx2 s[4:5], s[0:1], 80")
    I("s_load_dwordx2 s[32:33], s[0:1], 96")
    I("v_lshrrev_b32 v2, 6, v0"); I("v_and_b32 v1, 63, v0")
    I("v_readfirstlane_b32 s6, v2")
    I("s_lshl_b32 s7, s2, 2"); I("s_nop 1"); I("s_add_u32 s7, s7, s6")
    I(f"s_mul_hi_u32 s8, s7, {(2**32 + 97)//98}")
    I("s_mul_i32 s9, s8, 98"); I("s_sub_u32 s9, s7, s9")
    I(f"s_mul_hi_u32 s10, s9, {(2**32 + 13)//14}")
    I("s_mul_i32 s11, s10, 14"); I("s_sub_u32 s11, s9, s11")
    I("s_lshl_b32 s12, s9, 10")
    I("v_lshl_add_u32 v2, v1, 4, s12")
    I("s_lshr_b32 s3, s11, 1"); I("s_mul_i32 s3, s3, 28672")
    I("s_and_b32 s12, s11, 1"); I("s_lshl_b32 s12, s12, 6"); I("s_add_u32 s3, s3, s12")
    I("s_lshl_b32 s12, s10, 7"); I("s_add_u32 s3, s3, s12")
    I("v_and_b32 v3, 15, v1"); I("v_mul_u32_u24 v3, 1792, v3")
    I("v_lshrrev_b32 v4, 4, v1"); I("v_lshl_add_u32 v3, v4, 4, v3"); I("v_add_u32 v3, s3, v3")
    P.items.append(Ins("s_waitcnt lgkmcnt(0)"))
    I(f"s_mul_i32 s14, s8, {16*PSZ}")
    I("s_add_u32 s16, s32, s14"); I("s_addc_u32 s17, s33, 0"); I(f"s_mov_b32 s18, {16*PSZ}"); I("s_mov_b32 s19, 0x20000")
    for h in range(16):
        I(f"s_mov_b32 s{40+(h&1)}, {h*PSZ}")
        I(f"buffer_load_dwordx4 {vr(16+4*h,4)}, v2, s[16:19], s{40+(h&1)} offen{cfg.pld}")
    I("s_and_b32 s14, s8, 7"); I("s_mul_i32 s14, s14, 200704")
    I("s_lshr_b32 s15, s8, 3"); I("s_mul_i32 s15, s15, 896"); I("s_add_u32 s14, s14, s15")
    I("s_add_u32 s20, s4, s14"); I("s_addc_u32 s21, s5, 0")
    I(f"s_mov_b32 s22, {111*1792+896}"); I("s_mov_b32 s23, 0x20000")
    for h in range(16):
        for k in range(4):
            r = 16 + 4*h + k
            if h == 0:
                I(f"v_lshlrev_b32 v{8+2*k}, 16, v{r}"); I(f"v_and_b32 v{9+2*k}, 0xffff0000, v{r}")
            else:
                I(f"v_lshlrev_b32 v6, 16, v{r}"); I(f"v_and_b32 v7, 0xffff0000, v{r}")
                I(f"v_add_f32 v{8+2*k}, v{8+2*k}, v6"); I(f"v_add_f32 v{9+2*k}, v{9+2*k}, v7")
    for k in range(4): I(f"v_cvt_pk_bf16_f32 v{16+k}, v{8+2*k}, v{9+2*k}")
    I("s_nop 1")
    I("v_permlane32_swap_b32 v16, v18"); I("v_permlane32_swap_b32 v17, v19")
    I("s_nop 1")
    I("v_permlane16_swap_b32 v16, v18"); I("v_permlane16_swap_b32 v17, v19")
    I("buffer_store_dwordx4 v[16:19], v3, s[20:23], 0 offen")
    if cfg.stamp:
        P.wait(vm=0)
        I(f"s_memrealtime {sr(sST+2,2)}")
        P.items.append(Ins("s_waitcnt lgkmcnt(0)"))
        I("s_lshl_b32 s3, s2, 6")
        I(f"s_add_u32 s3, s3, {(480<<20)+256*64}")
        I("s_add_u32 s32, s32, s3"); I("s_addc_u32 s33, s33, 0")
        for i in range(4): I(f"v_mov_b32 v{4+i}, s{sST+i}")
        I("v_mov_b32 v3, 0")
        I("v_cmp_eq_u32 vcc, 0, v0")
        I("s_and_saveexec_b64 s[90:91], vcc")
        I("s_cbranch_execz L_end2")
        I("global_store_dwordx4 v3, v[4:7], s[32:33]")
    P.label("L_end2")
    I("s_endpgm")
    errs = check_hazards([x for x in P.items if isinstance(x, Ins)], "reduce")
    for e in errs: print("HAZARD", e, file=sys.stderr)
    assert not errs
    return P.text()

HEADER = open("concat_heads__gqa_block_cached__mha_block_cached__near_ridge.s.ref").read().split("; Override launch")[0]

def kd(name, vgpr, acc, sgpr=102):
    return f""".p2align 6
.amdhsa_kernel {name}
  .amdhsa_next_free_vgpr {vgpr}
  .amdhsa_next_free_sgpr {sgpr}
  .amdhsa_accum_offset {acc}
  .amdhsa_group_segment_fixed_size 0
  .amdhsa_kernarg_size 104
  .amdhsa_user_sgpr_count 2
  .amdhsa_user_sgpr_kernarg_segment_ptr 1
  .amdhsa_system_sgpr_workgroup_id_x 1
  .amdhsa_float_denorm_mode_32 3
.end_amdhsa_kernel
"""

def build(cfg):
    out = HEADER
    if cfg.inkernel:
        out += "; @launch grid=(256,1,1) block=(256,1,1) lds=163840\n"
    else:
        out += f"; @launch kernel={KN} grid=(256,1,1) block=(256,1,1) lds=163840\n"
        out += f"; @launch kernel={K2} grid=(392,1,1) block=(256,1,1) lds=0\n"
    out += '.amdgcn_target "amdgcn-amd-amdhsa--gfx950"\n.text\n'
    out += f".globl {KN}\n.p2align 8\n.type {KN},@function\n{KN}:\n"
    E = ["s_getpc_b64 s[94:95]", "s_cmp_lt_u32 s2, 256", "s_cbranch_scc1 L_go", "s_endpgm", "L_go:"]
    if cfg.stamp: E.append(f"s_memrealtime {sr(sST,2)}")
    E += ["s_load_dwordx16 s[8:23], s[0:1], 0", "s_load_dwordx8 s[24:31], s[0:1], 64", "s_load_dwordx2 s[32:33], s[0:1], 96",
          "v_lshrrev_b32 v2, 6, v0", "v_and_b32 v1, 63, v0", "v_readfirstlane_b32 s34, v2",
          "s_and_b32 s3, s2, 7", "s_lshr_b32 s7, s2, 3", "s_and_b32 s4, s7, 1", "s_lshl_b32 s3, s3, 1", "s_or_b32 s4, s4, s3",
          "s_bfe_u32 s5, s7, 0x10001", "s_lshr_b32 s6, s7, 2"]
    if cfg.hshift:
        E += [f"s_mul_i32 s3, s5, {cfg.hshift}", "s_add_u32 s4, s4, s3", "s_and_b32 s4, s4, 15"]
    two = tuple(cfg.polA) != tuple(cfg.polB)
    if two: E += ["s_cmp_eq_u32 s5, 0", "s_cbranch_scc1 L_brA", "s_branch L_brB", "L_brA:"]
    out += "".join((x if x.endswith(":") else "  " + x) + "\n" for x in E)
    for br, pol in ((("A", cfg.polA), ("B", cfg.polB)) if two else (("A", cfg.polA),)):
        if br == "B": out += ".p2align 3\nL_brB:\n"
        out += f"  s_cmp_eq_u32 s34, 3\n  s_cbranch_scc0 L{br}2_start\n  s_branch L{br}1_start\n"
        out += f".p2align 3\nL{br}2_start:\n" + Gen(cfg, 2, pol, f"L{br}2").build()
        out += f".p2align 3\nL{br}1_start:\n" + Gen(cfg, 1, pol, f"L{br}1").build()
    out += "L_exit:\n  s_endpgm\n"
    if not cfg.inkernel:
        out += f".globl {K2}\n.p2align 8\n.type {K2},@function\n{K2}:\n"
        out += reduce_kernel(cfg)
    out += '.section .rodata,"a"\n'
    out += kd(KN, 512, 256)
    if not cfg.inkernel: out += kd(K2, 80, 80)
    return out

if __name__ == "__main__":
    kw = {}
    outp = sys.argv[1]
    for a in sys.argv[2:]:
        k, v = a.split("=", 1)
        try: v = eval(v)
        except Exception: pass
        kw[k] = v
    import subprocess
    cfg = Cfg(**kw)
    open(outp, "w").write(build(cfg))
    subprocess.check_call(["clang", "-x", "assembler", "-target", "amdgcn-amd-amdhsa", "-mcpu=gfx950", "-c", outp, "-o", outp + ".o"])
    sym = subprocess.check_output(["llvm-objdump", "-t", outp + ".o"], text=True)
    cfg.codesize = [int(l.split()[0], 16) for l in sym.splitlines() if l.endswith(" L_exit")][0]
    cfg.pflines = min(64, -(-cfg.codesize // (128*32)))
    open(outp, "w").write(build(cfg))
    subprocess.check_call(["clang", "-x", "assembler", "-target", "amdgcn-amd-amdhsa", "-mcpu=gfx950", "-c", outp, "-o", outp + ".o"])
    print(outp, "code bytes", cfg.codesize)
```
